```python
import torch

def _softmax(x, axis=-1):
    return torch.softmax(x, dim=axis)
def _gelu(x):
    return torch.nn.functional.gelu(x, approximate="tanh")
def _silu(x):
    return torch.nn.functional.silu(x)
def _sigmoid(x):
    return torch.sigmoid(x)
def _layernorm(x, axis=-1, eps=1e-5):
    m = x.mean(dim=axis, keepdim=True)
    v = x.var(dim=axis, keepdim=True, unbiased=False)
    return (x - m) / torch.sqrt(v + eps)
def _scatter_add(tgt, idx, src, axis=0):
    return tgt.clone().index_add_(axis, idx, src)
def _segment_sum(src, seg, n):
    out = torch.zeros((n,) + src.shape[1:], dtype=src.dtype)
    return out.index_add_(0, seg, src)
def _pad(x, pw):
    flat = tuple(v for pair in reversed(pw) for v in pair)
    return torch.nn.functional.pad(x, flat)

kernel_name = 'parallel_sum__ssm_conv_h3__swiglu_ffn__prompt'

def setup_inputs():

    _w = (lambda a: (lambda t: t.to(torch.bfloat16) if t.is_floating_point() else t)(torch.as_tensor(a)))
    def _A_setup():
        B, S, D = 1, 2048, 512
        ks = 4
        return {
            "q": _w((lambda *s: torch.randn(*s, dtype=torch.bfloat16) * 0.05)(B, S, D)),
            "k": _w((lambda *s: torch.randn(*s, dtype=torch.bfloat16) * 0.4)(B, S, D)),
            "v": _w((lambda *s: torch.randn(*s, dtype=torch.bfloat16) * 0.4)(B, S, D)),
            "shift_k": _w((lambda *s: torch.randn(*s, dtype=torch.bfloat16) * 0.4)(D, ks) * 0.5),
            "ssm_k": _w((lambda *s: torch.randn(*s, dtype=torch.bfloat16) * 1.6)(D, S) * (1.0 / S ** 0.5)),
            "ssm_D": _w((lambda *s: torch.randn(*s, dtype=torch.bfloat16) * 0.8)(D)),
        }
    _A_in = _A_setup()

    def _B_setup():
        B, S, D, F = 1, 2048, 512, 1376
        return {
            "x": _w((lambda *s: torch.randn(*s, dtype=torch.bfloat16) * 0.05)(B, S, D)),
            "w_gate": _w((lambda *s: torch.randn(*s, dtype=torch.bfloat16) * 0.05)(D, F)),
            "w_up": _w((lambda *s: torch.randn(*s, dtype=torch.bfloat16) * 0.05)(D, F)),
            "w_down": _w((lambda *s: torch.randn(*s, dtype=torch.bfloat16) * 0.05)(F, D)),
        }
    _B_in = _B_setup()

    return {
        "A_q": _A_in["q"],
        "A_k": _A_in["k"],
        "A_v": _A_in["v"],
        "A_shift_k": _A_in["shift_k"],
        "A_ssm_k": _A_in["ssm_k"],
        "A_ssm_D": _A_in["ssm_D"],
        "B_x": _B_in["x"],
        "B_w_gate": _B_in["w_gate"],
        "B_w_up": _B_in["w_up"],
        "B_w_down": _B_in["w_down"],
    }

def reference(A_q, A_k, A_v, A_shift_k, A_ssm_k, A_ssm_D, B_x, B_w_gate, B_w_up, B_w_down):
    def _A_ref(q, k, v, shift_k, ssm_k, ssm_D):
        B, S, D = q.shape
        ks = shift_k.shape[-1]
        k_pad = _pad(k, ((0, 0), (ks - 1, 0), (0, 0)))
        k_shift = torch.zeros_like(k)
        for t in range(ks):
            k_shift = k_shift + k_pad[:, t:t + S, :] * shift_k[:, ks - 1 - t][None, None, :]
        kv = k_shift * v
        L = 2 * S
        kv_pad = _pad(kv, ((0, 0), (0, S), (0, 0)))
        kf_pad = _pad(ssm_k, ((0, 0), (0, S)))
        kv_f = (lambda x, axes=(-2,-1): torch.fft.rfft2(x.float(), dim=axes))(kv_pad[:, None, :, :], axes=(1, 2))
        kf_f = (lambda x, axes=(-2,-1): torch.fft.rfft2(x.float(), dim=axes))(kf_pad[:, None, :], axes=(1, 2))
        kf_f = (lambda x, *d: x.permute(*d))(kf_f, 1, 2, 0)
        y_f = kv_f * kf_f[None, :, :, :]
        y = (lambda x, s, axes=(-2,-1): torch.fft.irfft2(x, s=s, dim=axes).to(torch.bfloat16))(y_f, (1, L), axes=(1, 2))[:, 0, :S, :]
        y = y + kv * ssm_D[None, None, :]
        return q * y

    def _B_ref(x, w_gate, w_up, w_down):
        g = _silu(x @ w_gate)
        u = x @ w_up
        return (g * u) @ w_down

    x = A_q
    xn = _layernorm(x, axis=-1)
    return x + _A_ref(xn, A_k, A_v, A_shift_k, A_ssm_k, A_ssm_D) + _B_ref(xn, B_w_gate, B_w_up, B_w_down)
```

```python
import sys, os

NAME = "parallel_sum__ssm_conv_h3__swiglu_ffn__prompt"

S, D, F = 2048, 512, 1376
ARG = dict(q=0, k=8, v=16, shift_k=24, ssm_k=32, ssm_D=40, bx=48, wg=56, wu=64, wd=72,
           out=80, dbg=88, ws=96)
XN_OFF  = 0x000000
KVT_OFF = 0x200000
W1T_OFF = 0x400000
WDT_OFF = 0x700000
H_OFF   = 0x900000
Y2T_OFF = 0xF00000
WS_USED = 0x1100000
SRD3 = 0x00020000


class Asm:
    def __init__(self):
        self.L = []
    def __call__(self, fmt, *a):
        for line in fmt.strip().split("\n"):
            line = line.strip()
            if line:
                self.L.append("  " + line)
    def label(self, l):
        self.L.append(l + ":")
    def text(self):
        return "\n".join(self.L) + "\n"


def srd(a, dst, ptr, nbytes, off=0):
    if off:
        a(f"s_add_u32 s{dst}, s{ptr}, 0x{off:x}")
        a(f"s_addc_u32 s{dst+1}, s{ptr+1}, 0")
    else:
        a(f"s_mov_b32 s{dst}, s{ptr}")
        a(f"s_mov_b32 s{dst+1}, s{ptr+1}")
    a(f"s_and_b32 s{dst+1}, s{dst+1}, 0xffff")
    a(f"s_mov_b32 s{dst+2}, 0x{nbytes:x}")
    a(f"s_mov_b32 s{dst+3}, 0x{SRD3:x}")


def srd_s(a, dst, ptr, nbytes, soff):
    a(f"s_add_u32 s{dst}, s{ptr}, s{soff}")
    a(f"s_addc_u32 s{dst+1}, s{ptr+1}, 0")
    a(f"s_and_b32 s{dst+1}, s{dst+1}, 0xffff")
    a(f"s_mov_b32 s{dst+2}, 0x{nbytes:x}")
    a(f"s_mov_b32 s{dst+3}, 0x{SRD3:x}")


def unpack2(a, lo, hi, src):
    a(f"v_lshlrev_b32 v{lo}, 16, v{src}")
    a(f"v_and_b32 v{hi}, 0xffff0000, v{src}")


def round2(a, x, y, t):
    a(f"v_cvt_pk_bf16_f32 v{t}, v{x}, v{y}")
    a(f"v_lshlrev_b32 v{x}, 16, v{t}")
    a(f"v_and_b32 v{y}, 0xffff0000, v{t}")


def round1(a, x, t):
    a(f"v_cvt_pk_bf16_f32 v{t}, v{x}, v{x}")
    a(f"v_lshlrev_b32 v{x}, 16, v{t}")


def kernel_header(name):
    return (f".globl {name}\n.p2align 8\n.type {name},@function\n{name}:\n")


def kernel_desc(name, vgpr, sgpr=102):
    acc = (vgpr + 3) // 4 * 4
    return (f".p2align 6\n.amdhsa_kernel {name}\n"
            f"  .amdhsa_next_free_vgpr {vgpr}\n"
            f"  .amdhsa_next_free_sgpr {sgpr}\n"
            f"  .amdhsa_accum_offset {acc}\n"
            f"  .amdhsa_group_segment_fixed_size 0\n"
            f"  .amdhsa_kernarg_size 104\n"
            f"  .amdhsa_user_sgpr_count 2\n"
            f"  .amdhsa_user_sgpr_kernarg_segment_ptr 1\n"
            f"  .amdhsa_system_sgpr_workgroup_id_x 1\n"
            f".end_amdhsa_kernel\n")


N_LN, N_KV, N_TG, N_TD = 512, 256, 344, 344
PREP_WGS = N_LN + N_KV + 2 * N_TG + N_TD


def wave_allreduce(a, x, t, addr_regs):
    for r in addr_regs:
        a(f"ds_bpermute_b32 v{t}, v{r}, v{x}")
        a("s_waitcnt lgkmcnt(0)")
        a(f"v_add_f32 v{x}, v{x}, v{t}")


def gen_prep():
    a = Asm()
    a(f"""
    s_cmp_ge_u32 s2, {PREP_WGS}
    s_cbranch_scc1 PREP_END
    s_load_dwordx2 s[40:41], s[0:1], {ARG['ws']}
    s_cmp_ge_u32 s2, {N_LN}
    s_cbranch_scc1 PREP_NOT_LN
    """)
    a(f"s_load_dwordx2 s[42:43], s[0:1], {ARG['q']}")
    a("""
    v_lshrrev_b32 v1, 6, v0
    v_and_b32 v2, 63, v0
    s_lshl_b32 s3, s2, 2
    v_add_u32 v1, s3, v1
    v_lshlrev_b32 v1, 10, v1
    v_lshl_add_u32 v1, v2, 4, v1
    v_lshlrev_b32 v2, 2, v2
    """)
    ad = list(range(40, 46))
    for i, m in enumerate([1, 2, 4, 8, 16, 32]):
        a(f"v_xor_b32 v{ad[i]}, {m*4}, v2")
    a("s_waitcnt lgkmcnt(0)")
    srd(a, 8, 42, S * D * 2)
    srd(a, 12, 40, S * D * 2, XN_OFF)
    a("buffer_load_dwordx4 v[4:7], v1, s[8:11], 0 offen")
    a("s_waitcnt vmcnt(0)")
    for i in range(4):
        unpack2(a, 8 + 2 * i, 9 + 2 * i, 4 + i)
    a("""
    v_add_f32 v16, v8, v9
    v_add_f32 v17, v10, v11
    v_add_f32 v18, v12, v13
    v_add_f32 v19, v14, v15
    v_add_f32 v16, v16, v17
    v_add_f32 v18, v18, v19
    v_add_f32 v16, v16, v18
    """)
    wave_allreduce(a, 16, 17, ad)
    a("v_mul_f32 v16, 0x3b000000, v16")
    for i in range(8):
        a(f"v_sub_f32 v{20+i}, v{8+i}, v16")
    a("v_mul_f32 v17, v20, v20")
    for i in range(1, 8):
        a(f"v_fmac_f32 v17, v{20+i}, v{20+i}")
    wave_allreduce(a, 17, 18, ad)
    a("v_mul_f32 v17, 0x3b000000, v17")
    round2(a, 16, 17, 18)
    a("v_add_f32 v17, 0x3727c5ac, v17")
    round1(a, 17, 18)
    a("v_sqrt_f32 v17, v17")
    a("s_nop 0")
    round1(a, 17, 18)
    a("v_rcp_f32 v19, v17")
    for i in range(8):
        a(f"v_sub_f32 v{8+i}, v{8+i}, v16")
    for i in range(4):
        round2(a, 8 + 2 * i, 9 + 2 * i, 18)
    for i in range(8):
        x = 8 + i
        a(f"v_mul_f32 v28, v{x}, v19")
        a(f"v_fma_f32 v29, -v28, v17, v{x}")
        a(f"v_fma_f32 v{x}, v29, v19, v28")
    for i in range(4):
        a(f"v_cvt_pk_bf16_f32 v{4+i}, v{8+2*i}, v{9+2*i}")
    a("buffer_store_dwordx4 v[4:7], v1, s[12:15], 0 offen")
    a("s_endpgm")

    a.label("PREP_NOT_LN")
    a(f"s_cmp_ge_u32 s2, {N_LN + N_KV}")
    a("s_cbranch_scc1 PREP_TR")
    a(f"s_load_dwordx2 s[42:43], s[0:1], {ARG['k']}")
    a(f"s_load_dwordx2 s[44:45], s[0:1], {ARG['v']}")
    a(f"s_load_dwordx2 s[46:47], s[0:1], {ARG['shift_k']}")
    a(f"""
    s_sub_u32 s3, s2, {N_LN}
    s_lshr_b32 s4, s3, 3          ; stile
    s_and_b32 s5, s3, 7           ; dtile
    s_lshl_b32 s4, s4, 6          ; s0
    s_lshl_b32 s5, s5, 6          ; d0
    v_and_b32 v1, 7, v0           ; dch
    v_lshrrev_b32 v2, 3, v0       ; sr 0..31
    v_lshlrev_b32 v3, 3, v1
    v_add_u32 v3, s5, v3          ; d = d0 + 8*dch
    v_lshlrev_b32 v4, 3, v3
    v_add_u32 v5, s4, v2          ; s = s0 + sr
    v_lshlrev_b32 v5, 10, v5
    v_lshl_add_u32 v5, v3, 1, v5
    s_waitcnt lgkmcnt(0)
    """)
    srd(a, 8, 42, S * D * 2)
    srd(a, 12, 44, S * D * 2)
    srd(a, 16, 46, D * 4 * 2)
    srd(a, 20, 40, S * D * 2, KVT_OFF)
    for i in range(4):
        a(f"buffer_load_dwordx4 v[{16+4*i}:{19+4*i}], v4, s[16:19], 0 offen offset:{16*i}")
    a("""
    v_xor_b32 v6, 7, v2
    v_lshlrev_b32 v6, 1, v6
    v_lshl_add_u32 v6, v1, 10, v6
    """)
    a("s_waitcnt vmcnt(0)")
    for i in range(8):
        unpack2(a, 32 + i, 40 + i, 16 + 2 * i)
        unpack2(a, 48 + i, 56 + i, 17 + 2 * i)
    for p in range(2):
        a(f"v_add_u32 v7, {p*32*1024}, v5")
        a("buffer_load_dwordx4 v[64:67], v7, s[8:11], 0 offen")
        a("v_add_u32 v8, 0xfffffc00, v7")
        a("buffer_load_dwordx4 v[68:71], v8, s[8:11], 0 offen")
        a("v_add_u32 v8, 0xfffff800, v7")
        a("buffer_load_dwordx4 v[72:75], v8, s[8:11], 0 offen")
        a("v_add_u32 v8, 0xfffff400, v7")
        a("buffer_load_dwordx4 v[76:79], v8, s[8:11], 0 offen")
        a("buffer_load_dwordx4 v[80:83], v7, s[12:15], 0 offen")
        a("s_waitcnt vmcnt(0)")
        for m in range(4):
            acc0, acc1, t0, t1, tt = 84, 85, 86, 87, 88
            first = True
            for j in (3, 2, 1, 0):
                unpack2(a, t0, t1, 64 + 4 * j + m)
                a(f"v_mul_f32 v{t0}, v{t0}, v{32+8*j+2*m}")
                a(f"v_mul_f32 v{t1}, v{t1}, v{32+8*j+2*m+1}")
                if first:
                    round2(a, t0, t1, tt)
                    a(f"v_mov_b32 v{acc0}, v{t0}")
                    a(f"v_mov_b32 v{acc1}, v{t1}")
                    first = False
                else:
                    round2(a, t0, t1, tt)
                    a(f"v_add_f32 v{acc0}, v{acc0}, v{t0}")
                    a(f"v_add_f32 v{acc1}, v{acc1}, v{t1}")
                    round2(a, acc0, acc1, tt)
            unpack2(a, t0, t1, 80 + m)
            a(f"v_mul_f32 v{acc0}, v{acc0}, v{t0}")
            a(f"v_mul_f32 v{acc1}, v{acc1}, v{t1}")
            a(f"v_cvt_pk_bf16_f32 v{tt}, v{acc0}, v{acc1}")
            a(f"ds_write_b16 v6, v{tt} offset:{p*64 + (2*m)*128}")
            a(f"ds_write_b16_d16_hi v6, v{tt} offset:{p*64 + (2*m+1)*128}")
    a("s_waitcnt lgkmcnt(0)")
    a("s_barrier")
    a("""
    v_lshrrev_b32 v1, 3, v0       ; d_local 0..31
    v_and_b32 v2, 7, v0           ; chunk
    v_lshlrev_b32 v3, 7, v1
    v_lshl_add_u32 v3, v2, 4, v3
    v_add_u32 v4, s5, v1
    v_lshlrev_b32 v4, 12, v4      ; (d0+d_local)*4096
    v_lshl_add_u32 v4, v2, 4, v4
    s_lshl_b32 s6, s4, 1
    v_add_u32 v4, s6, v4
    ds_read_b128 v[8:11], v3
    ds_read_b128 v[12:15], v3 offset:4096
    v_add_u32 v5, 0x20000, v4
    s_waitcnt lgkmcnt(1)
    buffer_store_dwordx4 v[8:11], v4, s[20:23], 0 offen
    s_waitcnt lgkmcnt(0)
    buffer_store_dwordx4 v[12:15], v5, s[20:23], 0 offen
    s_endpgm
    """)

    a.label("PREP_TR")
    base = N_LN + N_KV
    a(f"s_cmp_ge_u32 s2, {base + 2*N_TG}")
    a("s_cbranch_scc1 PREP_TRD")
    a(f"s_load_dwordx2 s[42:43], s[0:1], {ARG['wg']}")
    a(f"s_load_dwordx2 s[44:45], s[0:1], {ARG['wu']}")
    a(f"""
    s_sub_u32 s3, s2, {base}
    s_cmp_ge_u32 s3, {N_TG}
    s_cselect_b32 s7, 1, 0            ; is_up
    s_cselect_b32 s6, {N_TG}, 0
    s_sub_u32 s3, s3, s6
    s_lshr_b32 s4, s3, 3              ; ftile 0..42
    s_and_b32 s5, s3, 7               ; ktile 0..7
    s_waitcnt lgkmcnt(0)
    s_cmp_eq_u32 s7, 1
    s_cselect_b32 s42, s44, s42
    s_cselect_b32 s43, s45, s43
    """)
    srd(a, 8, 42, D * F * 2)
    srd(a, 20, 40, 2 * F * D * 2, W1T_OFF)
    a(f"""
    v_lshrrev_b32 v1, 2, v0           ; krow 0..63
    v_and_b32 v2, 3, v0               ; fchunk
    s_lshl_b32 s8+0, s8+0, 0
    """.replace("s_lshl_b32 s8+0, s8+0, 0", ""))
    a(f"""
    s_lshl_b32 s24, s5, 6             ; k0
    s_lshl_b32 s25, s4, 5             ; f0
    v_add_u32 v3, s24, v1
    s_movk_i32 s26, {F*2}
    v_mul_lo_u32 v3, v3, s26
    v_lshlrev_b32 v4, 4, v2
    v_add_u32 v3, v3, v4
    s_lshl_b32 s27, s25, 1
    v_add_u32 v3, s27, v3
    buffer_load_dwordx4 v[8:11], v3, s[8:11], 0 offen
    v_lshlrev_b32 v5, 10, v2
    v_lshl_add_u32 v5, v1, 1, v5
    s_waitcnt vmcnt(0)
    """)
    for m in range(4):
        a(f"ds_write_b16 v5, v{8+m} offset:{(2*m)*128}")
        a(f"ds_write_b16_d16_hi v5, v{8+m} offset:{(2*m+1)*128}")
    a("""
    s_waitcnt lgkmcnt(0)
    s_barrier
    v_lshrrev_b32 v1, 3, v0           ; f_local 0..31
    v_and_b32 v2, 7, v0               ; chunk
    v_lshlrev_b32 v3, 7, v1
    v_lshl_add_u32 v3, v2, 4, v3
    ds_read_b128 v[8:11], v3
    ; dst row = ((f0+f_local)/16)*32 + (f_local%16) + 16*is_up
    v_add_u32 v4, s25, v1
    v_lshrrev_b32 v5, 4, v4
    v_lshlrev_b32 v5, 5, v5
    v_and_b32 v4, 15, v4
    v_add_u32 v4, v4, v5
    s_lshl_b32 s28, s7, 4
    v_add_u32 v4, s28, v4
    v_lshlrev_b32 v4, 10, v4
    v_lshl_add_u32 v4, v2, 4, v4
    s_lshl_b32 s29, s24, 1
    v_add_u32 v4, s29, v4
    s_waitcnt lgkmcnt(0)
    buffer_store_dwordx4 v[8:11], v4, s[20:23], 0 offen
    s_endpgm
    """)
    a.label("PREP_TRD")
    a(f"s_load_dwordx2 s[42:43], s[0:1], {ARG['wd']}")
    a(f"""
    s_sub_u32 s3, s2, {base + 2*N_TG}
    s_lshr_b32 s4, s3, 3              ; ftile 0..42
    s_and_b32 s5, s3, 7               ; dtile 0..7
    s_waitcnt lgkmcnt(0)
    """)
    srd(a, 8, 42, D * F * 2)
    srd(a, 20, 40, D * F * 2, WDT_OFF)
    a(f"""
    v_lshrrev_b32 v1, 3, v0           ; frow 0..31
    v_and_b32 v2, 7, v0               ; dchunk
    s_lshl_b32 s24, s4, 5             ; f0
    s_lshl_b32 s25, s5, 6             ; d0
    v_add_u32 v3, s24, v1
    v_lshlrev_b32 v3, 10, v3
    v_lshl_add_u32 v3, v2, 4, v3
    s_lshl_b32 s27, s25, 1
    v_add_u32 v3, s27, v3
    buffer_load_dwordx4 v[8:11], v3, s[8:11], 0 offen
    v_lshlrev_b32 v5, 9, v2
    v_lshl_add_u32 v5, v1, 1, v5
    s_waitcnt vmcnt(0)
    """)
    for m in range(4):
        a(f"ds_write_b16 v5, v{8+m} offset:{(2*m)*64}")
        a(f"ds_write_b16_d16_hi v5, v{8+m} offset:{(2*m+1)*64}")
    a(f"""
    s_waitcnt lgkmcnt(0)
    s_barrier
    v_lshrrev_b32 v1, 2, v0           ; d_local 0..63
    v_and_b32 v2, 3, v0               ; chunk
    v_lshlrev_b32 v3, 6, v1
    v_lshl_add_u32 v3, v2, 4, v3
    ds_read_b128 v[8:11], v3
    v_add_u32 v4, s25, v1
    s_movk_i32 s26, {F*2}
    v_mul_lo_u32 v4, v4, s26
    v_lshl_add_u32 v4, v2, 4, v4
    s_lshl_b32 s29, s24, 1
    v_add_u32 v4, s29, v4
    s_waitcnt lgkmcnt(0)
    buffer_store_dwordx4 v[8:11], v4, s[20:23], 0 offen
    s_endpgm
    """)
    a.label("PREP_END")
    a("s_endpgm")
    return a.text(), 96


G1_D = 6
G1_STAGE = 20 * 1024
G1_WGS = 240
G1_LDS = G1_D * G1_STAGE


def gen_gemm1():
    a = Asm()
    a(f"""
    s_cmp_ge_u32 s2, {G1_WGS}
    s_cbranch_scc1 G1_END
    s_load_dwordx2 s[40:41], s[0:1], {ARG['ws']}
    s_and_b32 s3, s2, 15              ; mi
    s_lshr_b32 s4, s2, 4              ; fi
    s_mul_i32 s4, s4, 6
    s_min_u32 s4, s4, 80              ; u0
    v_lshrrev_b32 v1, 6, v0
    s_nop 0
    v_readfirstlane_b32 s5, v1        ; wave
    v_and_b32 v2, 63, v0              ; lane
    v_and_b32 v3, 15, v2
    v_lshrrev_b32 v4, 4, v2
    v_lshlrev_b32 v5, 10, v3
    v_lshl_add_u32 v5, v4, 4, v5      ; v5 = voff (l%16)*1024 + (l/16)*16
    s_waitcnt lgkmcnt(0)
    """)
    srd(a, 8, 40, WS_USED)
    srd(a, 12, 40, S * F * 2, H_OFF)
    a("s_mul_i32 s6, s5, 5")
    for j in range(5):
        a(f"""
        s_add_u32 s7, s6, {j}             ; f
        s_lshl_b32 s30, s3, 7
        s_lshl_b32 s31, s7, 4
        s_add_u32 s30, s30, s31
        s_lshl_b32 s30, s30, 10
        s_sub_u32 s31, s7, 8
        s_lshl_b32 s31, s31, 4
        s_lshl_b32 s32, s4, 5
        s_add_u32 s31, s31, s32
        s_lshl_b32 s31, s31, 10
        s_add_u32 s31, s31, 0x{W1T_OFF:x}
        s_cmp_lt_u32 s7, 8
        s_cselect_b32 s{20+j}, s30, s31
        s_lshl_b32 s{25+j}, s7, 10
        """)
    a("""
    s_and_b32 s33, s5, 1              ; wm
    s_lshr_b32 s34, s5, 1             ; wf
    v_lshlrev_b32 v6, 4, v2           ; lane*16
    s_lshl_b32 s35, s33, 12           ; 4*wm*1024
    v_add_u32 v7, s35, v6
    s_mul_i32 s35, s34, 6144
    s_add_u32 s35, s35, 8192
    v_add_u32 v8, s35, v6
    """)
    VX0, VW0 = 10, 16
    for st in range(G1_D):
        a(f"v_add_u32 v{VX0+st}, {st*G1_STAGE}, v7")
        a(f"v_add_u32 v{VW0+st}, {st*G1_STAGE}, v8")
    ACC = 32
    FR = ACC + 96
    for i in range(96):
        a(f"v_mov_b32 v{ACC+i}, 0")

    def issue_stage(st):
        buf = st % G1_D
        for j in range(5):
            a(f"s_add_u32 m0, s{25+j}, {buf*G1_STAGE}")
            a("s_nop 0")
            a(f"buffer_load_dwordx4 v5, s[8:11], s{20+j} offen lds")
        a("v_add_u32 v5, 64, v5")

    def frag_reads(st, setb):
        buf = st % G1_D
        out = []
        for i in range(4):
            out.append(f"ds_read_b128 v[{setb+4*i}:{setb+4*i+3}], v{VX0+buf} offset:{i*1024}")
        for j in range(6):
            out.append(f"ds_read_b128 v[{setb+16+4*j}:{setb+16+4*j+3}], v{VW0+buf} offset:{j*1024}")
        return out

    NK = 16
    for st in range(G1_D):
        issue_stage(st)
    a(f"s_waitcnt vmcnt({5*(G1_D-1)})")
    a("s_barrier")
    for r in frag_reads(0, FR):
        a(r)
    a("s_waitcnt lgkmcnt(0)")
    for it in range(NK):
        cur = FR + 40 * (it % 2)
        nxt = FR + 40 * ((it + 1) % 2)
        if it + 1 < NK:
            issued = min(NK, G1_D + it)
            a(f"s_waitcnt vmcnt({5*(issued-(it+2))})")
            a("s_barrier")
            if it + G1_D < NK:
                issue_stage(it + G1_D)
            reads = frag_reads(it + 1, nxt)
        else:
            reads = []
        idx = 0
        for j in range(6):
            for i in range(4):
                if idx < len(reads):
                    a(reads[idx])
                idx += 1
                ac = ACC + (j * 4 + i) * 4
                a(f"v_mfma_f32_16x16x32_bf16 v[{ac}:{ac+3}], v[{cur+16+4*j}:{cur+16+4*j+3}], "
                  f"v[{cur+4*i}:{cur+4*i+3}], v[{ac}:{ac+3}]")
        a("s_waitcnt lgkmcnt(0)")
    a("s_nop 15")
    a(f"""
    s_movk_i32 s30, {F*2}
    v_mul_lo_u32 v6, v3, s30
    v_lshl_add_u32 v6, v4, 3, v6
    s_lshl_b32 s31, s3, 7
    s_lshl_b32 s32, s33, 6
    s_add_u32 s31, s31, s32
    s_mul_i32 s31, s31, s30           ; (mi*128+64*wm)*2752
    s_mul_i32 s32, s34, 3
    s_add_u32 s32, s32, s4
    s_lshl_b32 s32, s32, 5
    s_add_u32 s31, s31, s32           ; + (u0+3wf)*32
    """)
    T = 20
    for j in range(3):
        for i in range(4):
            g = ACC + ((2 * j) * 4 + i) * 4
            u = ACC + ((2 * j + 1) * 4 + i) * 4
            for h in range(2):
                g0, g1, u0_, u1 = g + 2 * h, g + 2 * h + 1, u + 2 * h, u + 2 * h + 1
                round2(a, g0, g1, T)
                a(f"v_mul_f32 v{T+1}, 0xbfb8aa3b, v{g0}")
                a(f"v_mul_f32 v{T+2}, 0xbfb8aa3b, v{g1}")
                a(f"v_exp_f32 v{T+1}, v{T+1}")
                a(f"v_exp_f32 v{T+2}, v{T+2}")
                round2(a, u0_, u1, T)
                a(f"v_add_f32 v{T+1}, 1.0, v{T+1}")
                a(f"v_add_f32 v{T+2}, 1.0, v{T+2}")
                a(f"v_rcp_f32 v{T+1}, v{T+1}")
                a(f"v_rcp_f32 v{T+2}, v{T+2}")
                a("s_nop 0")
                a(f"v_mul_f32 v{g0}, v{g0}, v{T+1}")
                a(f"v_mul_f32 v{g1}, v{g1}, v{T+2}")
                round2(a, g0, g1, T)
                a(f"v_mul_f32 v{g0}, v{g0}, v{u0_}")
                a(f"v_mul_f32 v{g1}, v{g1}, v{u1}")
                a(f"v_cvt_pk_bf16_f32 v{g+h}, v{g0}, v{g1}") if h == 1 else \
                    a(f"v_cvt_pk_bf16_f32 v{T+4}, v{g0}, v{g1}")
            a(f"v_mov_b32 v{T+5}, v{g+1}")
            a(f"s_add_u32 s35, s31, {i*16*F*2 + j*32}")
            a(f"buffer_store_dwordx2 v[{T+4}:{T+5}], v6, s[12:15], s35 offen")
            a("s_nop 0")
    a.label("G1_END")
    a("s_endpgm")
    return a.text(), FR + 80


CV_HP = 4160
CV_XL = 8 * CV_HP
CV_LDS = CV_XL + 96 * 80


def gen_conv():
    a = Asm()
    a(f"""
    s_cmp_ge_u32 s2, {D}
    s_cbranch_scc1 CV_END
    s_load_dwordx2 s[40:41], s[0:1], {ARG['ws']}
    s_load_dwordx2 s[42:43], s[0:1], {ARG['ssm_k']}
    s_load_dwordx2 s[44:45], s[0:1], {ARG['ssm_D']}
    s_lshl_b32 s3, s2, 12             ; d*4096
    v_lshrrev_b32 v1, 6, v0
    s_nop 0
    v_readfirstlane_b32 s5, v1        ; wave
    s_waitcnt lgkmcnt(0)
    """)
    srd_s(a, 8, 42, 4096, 3)
    a(f"s_add_u32 s6, s3, 0x{KVT_OFF:x}")
    srd_s(a, 12, 40, 4096, 6)
    a(f"s_add_u32 s6, s3, 0x{Y2T_OFF:x}")
    srd_s(a, 16, 40, 4096, 6)
    srd(a, 20, 44, D * 2)
    a("""
    v_lshlrev_b32 v2, 4, v0           ; 16*t
    v_add_u32 v3, 0xffffffc0, v2      ; 16*(t-4)
    buffer_load_dwordx4 v[8:11], v3, s[8:11], 0 offen
    buffer_load_dwordx4 v[12:15], v3, s[8:11], 0 offen offset:16
    buffer_load_dwordx4 v[16:19], v2, s[12:15], 0 offen
    v_add_u32 v4, 0xfc0, v2
    buffer_load_dwordx4 v[32:35], v4, s[8:11], 0 offen
    buffer_load_dwordx4 v[36:39], v4, s[8:11], 0 offen offset:16
    s_lshl_b32 s7, s2, 1
    v_mov_b32 v5, s7
    buffer_load_ushort v60, v5, s[20:23], 0 offen
    """)
    a(f"""
    v_lshrrev_b32 v5, 2, v0
    v_mul_u32_u24 v5, 80, v5
    v_and_b32 v6, 3, v0
    v_lshl_add_u32 v5, v6, 4, v5      ; (t/4)*80 + (t%4)*16
    v_mov_b32 v28, 0
    v_mov_b32 v29, 0
    v_mov_b32 v30, 0
    v_mov_b32 v31, 0
    v_cmp_gt_u32 vcc, 128, v0
    s_and_saveexec_b64 s[30:31], vcc
    ds_write_b128 v5, v[28:31] offset:{CV_XL}
    s_mov_b64 exec, s[30:31]
    s_waitcnt vmcnt(4)
    """)

    def build(wbase, addr, off0):
        for m in range(7):
            a(f"v_alignbit_b32 v{20+m}, v{wbase+m+1}, v{wbase+m}, 16")
        for rho in range(8):
            sig = rho + 1
            if sig % 2:
                m = (sig - 1) // 2
                src = 20 + m
            else:
                src = wbase + sig // 2
            if src % 2:
                for q in range(4):
                    a(f"v_mov_b32 v{40+q}, v{src+q}")
                src = 40
            a(f"ds_write_b128 v{addr}, v[{src}:{src+3}] offset:{rho*CV_HP+off0}")

    build(8, 2, 0)
    a("s_waitcnt vmcnt(3)")
    a(f"ds_write_b128 v5, v[16:19] offset:{CV_XL+32*80}")
    a("s_waitcnt vmcnt(1)")
    a("v_cmp_gt_u32 vcc, 4, v0")
    a("s_and_saveexec_b64 s[30:31], vcc")
    build(32, 2, 4096)
    a("s_mov_b64 exec, s[30:31]")
    a(f"""
    v_and_b32 v1, 63, v0              ; lane
    v_and_b32 v2, 31, v1              ; b / n
    v_lshrrev_b32 v3, 5, v1
    v_and_b32 v4, 7, v2               ; rho
    v_mul_u32_u24 v4, {CV_HP}, v4
    v_lshrrev_b32 v5, 3, v2
    v_lshl_add_u32 v4, v5, 4, v4
    v_lshlrev_b32 v5, 4, v3
    v_sub_u32 v4, v4, v5              ; -16kg
    s_lshl_b32 s6, s5, 6
    s_add_u32 s6, s6, 16              ; 64w + 48 - 32
    v_add_u32 v4, s6, v4              ; vA
    v_mul_u32_u24 v6, 80, v2
    v_add_u32 v6, v6, v5              ; n*80 + kg*16
    s_mul_i32 s6, s5, 80
    s_sub_u32 s6, {CV_XL + (32-60)*80}, s6
    v_add_u32 v6, s6, v6              ; vB
    s_waitcnt lgkmcnt(0)
    s_barrier
    """)
    ACC0, ACC1 = 64, 80
    for i in range(32):
        a(f"v_mov_b32 v{ACC0+i}, 0")
    steps = [(i, ks) for i in range(16) for ks in range(2)]
    FRB = 96
    def reads(n):
        i, ks = steps[n]
        fb = FRB + 12 * (n % 3)
        r = [f"ds_read_b128 v[{fb}:{fb+3}], v4 offset:{256*i + 32*(1-ks)}"]
        r.append(f"ds_read_b128 v[{fb+4}:{fb+7}], v6 offset:{(15-i)*320 + ks*32 + 2560}")
        if i < 8:
            r.append(f"ds_read_b128 v[{fb+8}:{fb+11}], v6 offset:{(15-i)*320 + ks*32}")
        return r
    for r in reads(0): a(r)
    for r in reads(1): a(r)
    for n in range(len(steps)):
        if n + 2 < len(steps):
            nx = reads(n + 2)
            for r in nx: a(r)
            a(f"s_waitcnt lgkmcnt({len(nx) + len(reads(n+1))})")
        elif n + 1 < len(steps):
            a(f"s_waitcnt lgkmcnt({len(reads(n+1))})")
        else:
            a("s_waitcnt lgkmcnt(0)")
        i, ks = steps[n]
        fb = FRB + 12 * (n % 3)
        a(f"v_mfma_f32_32x32x16_bf16 v[{ACC1}:{ACC1+15}], v[{fb}:{fb+3}], v[{fb+4}:{fb+7}], v[{ACC1}:{ACC1+15}]")
        if i < 8:
            a(f"v_mfma_f32_32x32x16_bf16 v[{ACC0}:{ACC0+15}], v[{fb}:{fb+3}], v[{fb+8}:{fb+11}], v[{ACC0}:{ACC0+15}]")
    a("s_nop 15")
    a("s_nop 3")
    a("s_barrier")
    a("""
    v_lshlrev_b32 v7, 4, v1
    s_lshl_b32 s6, s5, 13
    v_add_u32 v8, s6, v7
    """)
    for q in range(8):
        a(f"ds_write_b128 v8, v[{ACC0+4*q}:{ACC0+4*q+3}] offset:{q*1024}")
    a("s_waitcnt lgkmcnt(0)")
    a("s_barrier")
    a("""
    s_lshl_b32 s6, s5, 11             ; q0*1024 = 2w*1024
    v_add_u32 v8, s6, v7
    """)
    for qq in range(2):
        for p in range(4):
            a(f"ds_read_b128 v[{96+16*qq+4*p}:{96+16*qq+4*p+3}], v8 offset:{p*8192+qq*1024}")
    a(f"""
    s_lshr_b32 s6, s5, 1
    s_mul_i32 s6, s6, 2560
    s_and_b32 s7, s5, 1
    s_lshl_b32 s7, s7, 5
    s_add_u32 s6, s6, s7
    s_add_u32 s6, s6, {CV_XL + 32*80 + 8}
    v_mul_u32_u24 v9, 80, v2
    v_lshlrev_b32 v10, 3, v3
    v_sub_u32 v9, v9, v10
    v_add_u32 v9, s6, v9
    ds_read_b64 v[56:57], v9
    ds_read_b64 v[58:59], v9 offset:16
    s_waitcnt lgkmcnt(0)
    s_waitcnt vmcnt(0)
    v_lshlrev_b32 v60, 16, v60
    """)
    a("""
    s_lshr_b32 s6, s5, 1
    s_lshl_b32 s6, s6, 11
    s_and_b32 s7, s5, 1
    s_lshl_b32 s7, s7, 5
    s_add_u32 s6, s6, s7
    v_lshlrev_b32 v11, 6, v2
    v_lshl_add_u32 v11, v3, 3, v11
    v_add_u32 v11, s6, v11
    """)
    for qq in range(2):
        y = 96 + 16 * qq
        for r in range(4):
            a(f"v_add_f32 v{y+r}, v{y+r}, v{y+4+r}")
            a(f"v_add_f32 v{y+8+r}, v{y+8+r}, v{y+12+r}")
            a(f"v_add_f32 v{y+r}, v{y+r}, v{y+8+r}")
        round2(a, y, y + 1, 44)
        round2(a, y + 2, y + 3, 44)
        dA, dB = 56 + 2 * qq, 57 + 2 * qq
        unpack2(a, 48, 49, dA)
        unpack2(a, 50, 51, dB)
        for t in (48, 49, 50, 51):
            a(f"v_mul_f32 v{t}, v{t}, v60")
        round2(a, 48, 49, 44)
        round2(a, 50, 51, 44)
        a(f"v_add_f32 v{y}, v{y}, v51")
        a(f"v_add_f32 v{y+1}, v{y+1}, v50")
        a(f"v_add_f32 v{y+2}, v{y+2}, v49")
        a(f"v_add_f32 v{y+3}, v{y+3}, v48")
        a(f"v_cvt_pk_bf16_f32 v{52}, v{y}, v{y+1}")
        a(f"v_cvt_pk_bf16_f32 v{53}, v{y+2}, v{y+3}")
        a(f"buffer_store_dwordx2 v[52:53], v11, s[16:19], 0 offen offset:{16*qq}")
        a("s_nop 0")
    a.label("CV_END")
    a("s_endpgm")
    return a.text(), 132


G2_PP = 272
G2_PW = 64 * G2_PP
G2_YL = 0
G2_YP = 144
G2_P0 = 64 * G2_YP
G2_LDS = G2_P0 + 4 * G2_PW


def gen_gemm2():
    a = Asm()
    a(f"""
    s_cmp_ge_u32 s2, 256
    s_cbranch_scc1 G2_END
    s_load_dwordx2 s[40:41], s[0:1], {ARG['ws']}
    s_load_dwordx2 s[42:43], s[0:1], {ARG['q']}
    s_load_dwordx2 s[44:45], s[0:1], {ARG['out']}
    s_and_b32 s3, s2, 31              ; si
    s_lshr_b32 s4, s2, 5              ; di
    v_lshrrev_b32 v1, 6, v0
    s_nop 0
    v_readfirstlane_b32 s5, v1        ; wave
    v_and_b32 v2, 63, v0
    v_and_b32 v3, 15, v2
    v_lshrrev_b32 v4, 4, v2
    s_waitcnt lgkmcnt(0)
    """)
    srd(a, 8, 40, S * F * 2, H_OFF)
    srd(a, 12, 40, D * F * 2, WDT_OFF)
    srd(a, 16, 40, S * D * 2, Y2T_OFF)
    srd(a, 20, 40, S * D * 2, XN_OFF)
    srd(a, 24, 42, S * D * 2)
    srd(a, 28, 44, S * D * 2)
    a(f"""
    s_movk_i32 s34, {F*2}
    s_lshl_b32 s35, s3, 6             ; s0
    s_lshl_b32 s36, s4, 6             ; d0
    v_add_u32 v5, s35, v3
    v_mul_lo_u32 v5, v5, s34
    v_lshl_add_u32 v5, v4, 4, v5
    v_add_u32 v6, s36, v3
    v_mul_lo_u32 v6, v6, s34
    v_lshl_add_u32 v6, v4, 4, v6
    s_mul_i32 s37, s5, 704
    """)
    for i in range(1, 4):
        a(f"v_add_u32 v{8+i}, {i*16*F*2}, v5")
        a(f"v_add_u32 v{12+i}, {i*16*F*2}, v6")
    a("v_mov_b32 v8, v5")
    a("v_mov_b32 v12, v6")
    a(f"""
    v_lshrrev_b32 v16, 2, v0
    v_and_b32 v17, 3, v0
    v_add_u32 v18, s36, v16
    v_lshlrev_b32 v18, 12, v18
    v_lshl_add_u32 v18, v17, 5, v18
    s_lshl_b32 s38, s35, 1
    v_add_u32 v18, s38, v18
    buffer_load_dwordx4 v[20:23], v18, s[16:19], 0 offen
    buffer_load_dwordx4 v[24:27], v18, s[16:19], 0 offen offset:16
    v_mul_u32_u24 v19, {G2_YP}, v16
    v_lshl_add_u32 v19, v17, 5, v19
    """)
    ACC = 32
    FR = 96
    NS = 4
    for i in range(64):
        a(f"v_mov_b32 v{ACC+i}, 0")
    def loads(step):
        fb = FR + 32 * (step % NS)
        for i in range(4):
            a(f"buffer_load_dwordx4 v[{fb+4*i}:{fb+4*i+3}], v{8+i}, s[8:11], s37 offen offset:{step*64}")
            a(f"buffer_load_dwordx4 v[{fb+16+4*i}:{fb+16+4*i+3}], v{12+i}, s[12:15], s37 offen offset:{step*64}")
    for st in range(NS - 1):
        loads(st)
    NST = 11
    for st in range(NST):
        if st + NS - 1 < NST:
            loads(st + NS - 1)
            a(f"s_waitcnt vmcnt({8*(NS-1)})")
        else:
            a(f"s_waitcnt vmcnt({8*(NST-1-st)})")
        if st == NST - 1:
            a("s_cmp_eq_u32 s5, 3")
            a("s_cbranch_scc1 G2_SKIP")
        fb = FR + 32 * (st % NS)
        for db in range(4):
            for sb in range(4):
                ac = ACC + (db * 4 + sb) * 4
                a(f"v_mfma_f32_16x16x32_bf16 v[{ac}:{ac+3}], v[{fb+16+4*db}:{fb+16+4*db+3}], "
                  f"v[{fb+4*sb}:{fb+4*sb+3}], v[{ac}:{ac+3}]")
    a.label("G2_SKIP")
    a("s_nop 15")
    a(f"ds_write_b128 v19, v[20:23] offset:{G2_YL}")
    a(f"ds_write_b128 v19, v[24:27] offset:{G2_YL+16}")
    a(f"""
    v_mul_u32_u24 v5, {G2_PP}, v3
    v_lshl_add_u32 v5, v4, 4, v5
    s_mul_i32 s38, s5, {G2_PW}
    s_add_u32 s38, s38, {G2_P0}
    v_add_u32 v5, s38, v5
    """)
    for db in range(4):
        for sb in range(4):
            ac = ACC + (db * 4 + sb) * 4
            a(f"ds_write_b128 v5, v[{ac}:{ac+3}] offset:{sb*16*G2_PP + db*64}")
    a("s_waitcnt lgkmcnt(0)")
    a("s_barrier")
    a(f"""
    v_lshrrev_b32 v1, 3, v0
    v_and_b32 v2, 7, v0
    v_mul_u32_u24 v3, {G2_PP}, v1
    v_lshl_add_u32 v3, v2, 5, v3
    v_add_u32 v3, {G2_P0}, v3
    v_add_u32 v7, {2*G2_PW}, v3
    v_mul_u32_u24 v4, {8*G2_YP}, v2
    v_lshl_add_u32 v4, v1, 1, v4          ; y2 addr
    v_add_u32 v5, s35, v1
    v_lshlrev_b32 v5, 10, v5
    v_lshl_add_u32 v5, v2, 4, v5
    s_lshl_b32 s38, s36, 1
    v_add_u32 v5, s38, v5
    """)
    for p in range(2):
        a(f"v_add_u32 v6, {p*32*1024}, v5")
        a("buffer_load_dwordx4 v[8:11], v6, s[24:27], 0 offen")
        a("buffer_load_dwordx4 v[12:15], v6, s[20:23], 0 offen")
        for w in range(4):
            ar = 3 if w < 2 else 7
            a(f"ds_read_b128 v[{32+8*w}:{35+8*w}], v{ar} offset:{(w%2)*G2_PW + p*32*G2_PP}")
            a(f"ds_read_b128 v[{36+8*w}:{39+8*w}], v{ar} offset:{(w%2)*G2_PW + p*32*G2_PP + 16}")
        for i in range(8):
            a(f"ds_read_u16 v{64+i}, v4 offset:{G2_YL + i*G2_YP + p*64}")
        a("s_waitcnt lgkmcnt(0)")
        for i in range(8):
            a(f"v_add_f32 v{32+i}, v{32+i}, v{40+i}")
            a(f"v_add_f32 v{48+i}, v{48+i}, v{56+i}")
            a(f"v_add_f32 v{32+i}, v{32+i}, v{48+i}")
            a(f"v_lshlrev_b32 v{64+i}, 16, v{64+i}")
        a("s_waitcnt vmcnt(0)")
        for m in range(4):
            unpack2(a, 72 + 2 * m, 73 + 2 * m, 8 + m)
            unpack2(a, 80 + 2 * m, 81 + 2 * m, 12 + m)
        for m in range(4):
            e0, e1 = 2 * m, 2 * m + 1
            a(f"v_mul_f32 v{80+e0}, v{80+e0}, v{64+e0}")
            a(f"v_mul_f32 v{80+e1}, v{80+e1}, v{64+e1}")
            round2(a, 80 + e0, 80 + e1, 88)
            a(f"v_add_f32 v{72+e0}, v{72+e0}, v{80+e0}")
            a(f"v_add_f32 v{72+e1}, v{72+e1}, v{80+e1}")
            round2(a, 72 + e0, 72 + e1, 88)
            round2(a, 32 + e0, 32 + e1, 88)
            a(f"v_add_f32 v{72+e0}, v{72+e0}, v{32+e0}")
            a(f"v_add_f32 v{72+e1}, v{72+e1}, v{32+e1}")
            a(f"v_cvt_pk_bf16_f32 v{8+m}, v{72+e0}, v{72+e1}")
        a("buffer_store_dwordx4 v[8:11], v6, s[28:31], 0 offen")
        a("s_nop 1")
    a.label("G2_END")
    a("s_endpgm")
    return a.text(), FR + 32 * NS


def main():
    hdr = open(os.path.join(os.path.dirname(__file__), "header.txt")).read()
    kernels = [("prep_kernel", gen_prep(), (PREP_WGS, 256, 8192)),
               ("gemm1_kernel", gen_gemm1(), (G1_WGS, 256, G1_LDS)),
               ("conv_kernel", gen_conv(), (D, 256, CV_LDS)),
               ("gemm2_kernel", gen_gemm2(), (256, 256, G2_LDS))]
    out = hdr
    for n, _, (g, b, l) in kernels:
        out += f"; @launch kernel={n} grid=({g},1,1) block=({b},1,1) lds={l}\n"
    out += '.amdgcn_target "amdgcn-amd-amdhsa--gfx950"\n.text\n'
    for n, (body, _), _ in kernels:
        out += kernel_header(n) + body
    out += '.section .rodata,"a"\n'
    for n, (_, vg), _ in kernels:
        out += kernel_desc(n, vg)
    dst = sys.argv[1] if len(sys.argv) > 1 else f"cdna_kernels/{NAME}.s"
    open(dst, "w").write(out)
    print("wrote", dst, len(out))


if __name__ == "__main__":
    main()
```

```python
import sys, os

NAME = "parallel_sum__ssm_conv_h3__swiglu_ffn__prompt"

S, D, F = 2048, 512, 1376
ARG = dict(q=0, k=8, v=16, shift_k=24, ssm_k=32, ssm_D=40, bx=48, wg=56, wu=64, wd=72,
           out=80, dbg=88, ws=96)
XN_OFF  = 0x000000
KVT_OFF = 0x200000
W1T_OFF = 0x400000
WDT_OFF = 0x700000
H_OFF   = 0x900000
Y2T_OFF = 0xF00000
WS_USED = 0x1100000
SRD3 = 0x00020000


class Asm:
    def __init__(self):
        self.L = []
    def __call__(self, fmt, *a):
        for line in fmt.strip().split("\n"):
            line = line.strip()
            if line:
                self.L.append("  " + line)
    def label(self, l):
        self.L.append(l + ":")
    def text(self):
        return "\n".join(self.L) + "\n"


def srd(a, dst, ptr, nbytes, off=0):
    if off:
        a(f"s_add_u32 s{dst}, s{ptr}, 0x{off:x}")
        a(f"s_addc_u32 s{dst+1}, s{ptr+1}, 0")
    else:
        a(f"s_mov_b32 s{dst}, s{ptr}")
        a(f"s_mov_b32 s{dst+1}, s{ptr+1}")
    a(f"s_and_b32 s{dst+1}, s{dst+1}, 0xffff")
    a(f"s_mov_b32 s{dst+2}, 0x{nbytes:x}")
    a(f"s_mov_b32 s{dst+3}, 0x{SRD3:x}")


def srd_s(a, dst, ptr, nbytes, soff):
    a(f"s_add_u32 s{dst}, s{ptr}, s{soff}")
    a(f"s_addc_u32 s{dst+1}, s{ptr+1}, 0")
    a(f"s_and_b32 s{dst+1}, s{dst+1}, 0xffff")
    a(f"s_mov_b32 s{dst+2}, 0x{nbytes:x}")
    a(f"s_mov_b32 s{dst+3}, 0x{SRD3:x}")


def unpack2(a, lo, hi, src):
    a(f"v_lshlrev_b32 v{lo}, 16, v{src}")
    a(f"v_and_b32 v{hi}, 0xffff0000, v{src}")


def round2(a, x, y, t):
    a(f"v_cvt_pk_bf16_f32 v{t}, v{x}, v{y}")
    a(f"v_lshlrev_b32 v{x}, 16, v{t}")
    a(f"v_and_b32 v{y}, 0xffff0000, v{t}")


def round1(a, x, t):
    a(f"v_cvt_pk_bf16_f32 v{t}, v{x}, v{x}")
    a(f"v_lshlrev_b32 v{x}, 16, v{t}")


STAMPS = os.environ.get("STAMPS", "0") == "1"
_stamp_n = [0]


def stamp(a, real=False):
    if not STAMPS:
        return
    i = _stamp_n[0]
    _stamp_n[0] += 1
    REAL = os.environ.get("REALT", "0") == "1"
    a(f"s_mem{'real' if REAL else ''}time s[{70+2*i}:{71+2*i}]")
    a("s_waitcnt lgkmcnt(0)")


def stamp_flush(a, tag, only=None, slot=0):
    if not STAMPS:
        return
    n = _stamp_n[0]
    _stamp_n[0] = 0
    a(f"""
    s_load_dwordx2 s[66:67], s[0:1], {ARG['dbg']}
    s_waitcnt lgkmcnt(0)
    """)
    srd(a, 60, 66, 256)
    a(f"""
    v_cmp_gt_u32 vcc, 64, v0
    s_and_saveexec_b64 s[64:65], vcc
    s_cbranch_execz STF_{tag}
    """)
    if only is None:
        a(f"""
        s_and_b32 s68, s2, 63
        s_cmp_lg_u32 s68, 0
        s_cbranch_scc1 STF_{tag}
        s_lshr_b32 s68, s2, 6
        s_mul_i32 s68, s68, 64
        """)
    else:
        a(f"""
        s_cmp_lg_u32 s2, {only}
        s_cbranch_scc1 STF_{tag}
        s_mov_b32 s68, {slot*64}
        """)
    for i in range(n):
        a(f"v_mov_b32 v250, s{70+2*i}")
        a(f"v_mov_b32 v251, {4*i}")
        a("buffer_store_dword v250, v251, s[60:63], s68 offen")
    a.label(f"STF_{tag}")
    a("s_mov_b64 exec, s[64:65]")


def kernel_header(name):
    return (f".globl {name}\n.p2align 8\n.type {name},@function\n{name}:\n")


def kernel_desc(name, vgpr, sgpr=102):
    acc = (vgpr + 3) // 4 * 4
    return (f".p2align 6\n.amdhsa_kernel {name}\n"
            f"  .amdhsa_next_free_vgpr {vgpr}\n"
            f"  .amdhsa_next_free_sgpr {sgpr}\n"
            f"  .amdhsa_accum_offset {acc}\n"
            f"  .amdhsa_group_segment_fixed_size 0\n"
            f"  .amdhsa_kernarg_size 104\n"
            f"  .amdhsa_user_sgpr_count 2\n"
            f"  .amdhsa_user_sgpr_kernarg_segment_ptr 1\n"
            f"  .amdhsa_system_sgpr_workgroup_id_x 1\n"
            f".end_amdhsa_kernel\n")


N_LN, N_KV, N_TG, N_TD = 512, 256, 344, 344
PREP_WGS = N_LN + N_KV + 2 * N_TG + N_TD


def wave_allreduce(a, x, t, addr_regs):
    for r in addr_regs:
        a(f"ds_bpermute_b32 v{t}, v{r}, v{x}")
        a("s_waitcnt lgkmcnt(0)")
        a(f"v_add_f32 v{x}, v{x}, v{t}")


def wave_allreduce_dpp(a, x):
    for mode in ("quad_perm:[1,0,3,2]", "quad_perm:[2,3,0,1]", "row_half_mirror", "row_mirror"):
        a("s_nop 1")
        a(f"v_add_f32_dpp v{x}, v{x}, v{x} {mode} row_mask:0xf bank_mask:0xf")
    a("s_nop 0")
    for i in range(4):
        a(f"v_readlane_b32 s{60+i}, v{x}, {16*i}")
    a("s_nop 1")
    a(f"v_mov_b32 v{x}, s60")
    for i in range(1, 4):
        a(f"v_add_f32 v{x}, s{60+i}, v{x}")


def gen_prep():
    a = Asm()
    a(f"""
    s_cmp_ge_u32 s2, {PREP_WGS}
    s_cbranch_scc1 PREP_END
    s_load_dwordx2 s[40:41], s[0:1], {ARG['ws']}
    s_cmp_ge_u32 s2, {N_LN}
    s_cbranch_scc1 PREP_NOT_LN
    """)
    a(f"s_load_dwordx2 s[42:43], s[0:1], {ARG['q']}")
    a("""
    v_lshrrev_b32 v1, 6, v0
    v_and_b32 v2, 63, v0
    s_lshl_b32 s3, s2, 2
    v_add_u32 v1, s3, v1
    v_lshlrev_b32 v1, 10, v1
    v_lshl_add_u32 v1, v2, 4, v1
    v_lshlrev_b32 v2, 2, v2
    """)
    ad = list(range(40, 46))
    for i, m in enumerate([1, 2, 4, 8, 16, 32]):
        a(f"v_xor_b32 v{ad[i]}, {m*4}, v2")
    a("s_waitcnt lgkmcnt(0)")
    srd(a, 8, 42, S * D * 2)
    srd(a, 12, 40, S * D * 2, XN_OFF)
    stamp(a)
    a("buffer_load_dwordx4 v[4:7], v1, s[8:11], 0 offen")
    a("s_waitcnt vmcnt(0)")
    stamp(a)
    for i in range(4):
        unpack2(a, 8 + 2 * i, 9 + 2 * i, 4 + i)
    a("""
    v_add_f32 v16, v8, v9
    v_add_f32 v17, v10, v11
    v_add_f32 v18, v12, v13
    v_add_f32 v19, v14, v15
    v_add_f32 v16, v16, v17
    v_add_f32 v18, v18, v19
    v_add_f32 v16, v16, v18
    """)
    wave_allreduce_dpp(a, 16)
    a("v_mul_f32 v16, 0x3b000000, v16")
    for i in range(8):
        a(f"v_sub_f32 v{20+i}, v{8+i}, v16")
    a("v_mul_f32 v17, v20, v20")
    for i in range(1, 8):
        a(f"v_fmac_f32 v17, v{20+i}, v{20+i}")
    wave_allreduce_dpp(a, 17)
    a("v_mul_f32 v17, 0x3b000000, v17")
    round2(a, 16, 17, 18)
    a("v_add_f32 v17, 0x3727c5ac, v17")
    round1(a, 17, 18)
    a("v_sqrt_f32 v17, v17")
    a("s_nop 0")
    round1(a, 17, 18)
    a("v_rcp_f32 v19, v17")
    for i in range(8):
        a(f"v_sub_f32 v{8+i}, v{8+i}, v16")
    for i in range(4):
        round2(a, 8 + 2 * i, 9 + 2 * i, 18)
    for i in range(8):
        x = 8 + i
        a(f"v_mul_f32 v28, v{x}, v19")
        a(f"v_fma_f32 v29, -v28, v17, v{x}")
        a(f"v_fma_f32 v{x}, v29, v19, v28")
    for i in range(4):
        a(f"v_cvt_pk_bf16_f32 v{4+i}, v{8+2*i}, v{9+2*i}")
    a("""
    v_lshrrev_b32 v30, 10, v1          ; row
    v_lshrrev_b32 v31, 4, v30
    v_lshlrev_b32 v31, 14, v31         ; (r/16)*16*1024
    v_and_b32 v30, 15, v30
    v_lshl_add_u32 v31, v30, 4, v31    ; + (r%16)*16
    v_and_b32 v30, 63, v0
    v_lshrrev_b32 v32, 2, v30
    v_lshl_add_u32 v31, v32, 10, v31   ; + (l/4)*1024
    v_and_b32 v30, 3, v30
    v_lshl_add_u32 v31, v30, 8, v31    ; + (l%4)*256
    """)
    a("buffer_store_dwordx4 v[4:7], v31, s[12:15], 0 offen")
    stamp(a); stamp_flush(a, "P0", 100, 0)
    a("s_endpgm")

    a.label("PREP_NOT_LN")
    a(f"s_cmp_ge_u32 s2, {N_LN + N_KV}")
    a("s_cbranch_scc1 PREP_TR")
    a(f"s_load_dwordx2 s[42:43], s[0:1], {ARG['k']}")
    a(f"s_load_dwordx2 s[44:45], s[0:1], {ARG['v']}")
    a(f"s_load_dwordx2 s[46:47], s[0:1], {ARG['shift_k']}")
    a(f"""
    s_sub_u32 s3, s2, {N_LN}
    s_lshr_b32 s4, s3, 3          ; stile
    s_and_b32 s5, s3, 7           ; dtile
    s_lshl_b32 s4, s4, 6          ; s0
    s_lshl_b32 s5, s5, 6          ; d0
    v_and_b32 v1, 7, v0           ; dch
    v_lshrrev_b32 v2, 3, v0       ; sr 0..31
    v_lshlrev_b32 v3, 3, v1
    v_add_u32 v3, s5, v3          ; d = d0 + 8*dch
    v_lshlrev_b32 v4, 3, v3
    v_add_u32 v5, s4, v2          ; s = s0 + sr
    v_lshlrev_b32 v5, 10, v5
    v_lshl_add_u32 v5, v3, 1, v5
    s_waitcnt lgkmcnt(0)
    """)
    srd(a, 8, 42, S * D * 2)
    srd(a, 12, 44, S * D * 2)
    srd(a, 16, 46, D * 4 * 2)
    srd(a, 20, 40, S * D * 2, KVT_OFF)
    stamp(a)
    for i in range(4):
        a(f"buffer_load_dwordx4 v[{16+4*i}:{19+4*i}], v4, s[16:19], 0 offen offset:{16*i}")
    for p in range(2):
        KB = 32 + 20 * p
        a(f"v_add_u32 v7, {p*32*1024}, v5")
        a(f"buffer_load_dwordx4 v[{KB}:{KB+3}], v7, s[8:11], 0 offen")
        a("v_add_u32 v8, 0xfffffc00, v7")
        a(f"buffer_load_dwordx4 v[{KB+4}:{KB+7}], v8, s[8:11], 0 offen")
        a("v_add_u32 v8, 0xfffff800, v7")
        a(f"buffer_load_dwordx4 v[{KB+8}:{KB+11}], v8, s[8:11], 0 offen")
        a("v_add_u32 v8, 0xfffff400, v7")
        a(f"buffer_load_dwordx4 v[{KB+12}:{KB+15}], v8, s[8:11], 0 offen")
        a(f"buffer_load_dwordx4 v[{KB+16}:{KB+19}], v7, s[12:15], 0 offen")
    a("""
    v_xor_b32 v6, 7, v2
    v_lshlrev_b32 v6, 1, v6
    v_lshl_add_u32 v6, v1, 10, v6
    """)
    a("s_waitcnt vmcnt(10)")
    for p in range(2):
        a(f"s_waitcnt vmcnt({5*(1-p)})")
        KB = 32 + 20 * p
        for m in range(4):
            acc0, acc1, t0, t1, tt = 9, 10, 11, 12, 13
            first = True
            for j in (3, 2, 1, 0):
                unpack2(a, t0, t1, KB + 4 * j + m)
                for (tt_, e) in ((t0, 0), (t1, 1)):
                    wd_ = 16 + 4 * m + 2 * e + j // 2
                    if j % 2 == 0:
                        a(f"v_lshlrev_b32 v{tt}, 16, v{wd_}")
                    else:
                        a(f"v_and_b32 v{tt}, 0xffff0000, v{wd_}")
                    a(f"v_mul_f32 v{tt_}, v{tt_}, v{tt}")
                if first:
                    round2(a, t0, t1, tt)
                    a(f"v_mov_b32 v{acc0}, v{t0}")
                    a(f"v_mov_b32 v{acc1}, v{t1}")
                    first = False
                else:
                    round2(a, t0, t1, tt)
                    a(f"v_add_f32 v{acc0}, v{acc0}, v{t0}")
                    a(f"v_add_f32 v{acc1}, v{acc1}, v{t1}")
                    round2(a, acc0, acc1, tt)
            unpack2(a, t0, t1, KB + 16 + m)
            a(f"v_mul_f32 v{acc0}, v{acc0}, v{t0}")
            a(f"v_mul_f32 v{acc1}, v{acc1}, v{t1}")
            a(f"v_cvt_pk_bf16_f32 v{tt}, v{acc0}, v{acc1}")
            a(f"ds_write_b16 v6, v{tt} offset:{p*64 + (2*m)*128}")
            a(f"ds_write_b16_d16_hi v6, v{tt} offset:{p*64 + (2*m+1)*128}")
    a("s_waitcnt lgkmcnt(0)")
    a("s_barrier")
    a("""
    v_lshrrev_b32 v1, 3, v0       ; d_local 0..31
    v_and_b32 v2, 7, v0           ; chunk
    v_lshlrev_b32 v3, 7, v1
    v_lshl_add_u32 v3, v2, 4, v3
    v_add_u32 v4, s5, v1
    v_lshlrev_b32 v4, 12, v4      ; (d0+d_local)*4096
    v_lshl_add_u32 v4, v2, 4, v4
    s_lshl_b32 s6, s4, 1
    v_add_u32 v4, s6, v4
    ds_read_b128 v[8:11], v3
    ds_read_b128 v[12:15], v3 offset:4096
    v_add_u32 v5, 0x20000, v4
    s_waitcnt lgkmcnt(1)
    buffer_store_dwordx4 v[8:11], v4, s[20:23], 0 offen
    s_waitcnt lgkmcnt(0)
    buffer_store_dwordx4 v[12:15], v5, s[20:23], 0 offen
    """)
    stamp(a); stamp_flush(a, "P1", 600, 1)
    a("s_endpgm")

    a.label("PREP_TR")
    base = N_LN + N_KV
    a(f"s_cmp_ge_u32 s2, {base + 2*N_TG}")
    a("s_cbranch_scc1 PREP_TRD")
    a(f"s_load_dwordx2 s[42:43], s[0:1], {ARG['wg']}")
    a(f"s_load_dwordx2 s[44:45], s[0:1], {ARG['wu']}")
    a(f"""
    s_sub_u32 s3, s2, {base}
    s_cmp_ge_u32 s3, {N_TG}
    s_cselect_b32 s7, 1, 0            ; is_up
    s_cselect_b32 s6, {N_TG}, 0
    s_sub_u32 s3, s3, s6
    s_lshr_b32 s4, s3, 3              ; ftile 0..42
    s_and_b32 s5, s3, 7               ; ktile 0..7
    s_waitcnt lgkmcnt(0)
    s_cmp_eq_u32 s7, 1
    s_cselect_b32 s42, s44, s42
    s_cselect_b32 s43, s45, s43
    """)
    srd(a, 8, 42, D * F * 2)
    srd(a, 20, 40, 2 * F * D * 2, W1T_OFF)
    a(f"""
    v_lshrrev_b32 v1, 2, v0           ; krow 0..63
    v_and_b32 v2, 3, v0               ; fchunk
    s_lshl_b32 s8+0, s8+0, 0
    """.replace("s_lshl_b32 s8+0, s8+0, 0", ""))
    a(f"""
    s_lshl_b32 s24, s5, 6             ; k0
    s_lshl_b32 s25, s4, 5             ; f0
    v_add_u32 v3, s24, v1
    s_movk_i32 s26, {F*2}
    v_mul_lo_u32 v3, v3, s26
    v_lshlrev_b32 v4, 4, v2
    v_add_u32 v3, v3, v4
    s_lshl_b32 s27, s25, 1
    v_add_u32 v3, s27, v3
    buffer_load_dwordx4 v[8:11], v3, s[8:11], 0 offen
    v_lshlrev_b32 v5, 10, v2
    v_lshl_add_u32 v5, v1, 1, v5
    s_waitcnt vmcnt(0)
    """)
    for m in range(4):
        a(f"ds_write_b16 v5, v{8+m} offset:{(2*m)*128}")
        a(f"ds_write_b16_d16_hi v5, v{8+m} offset:{(2*m+1)*128}")
    a("""
    s_waitcnt lgkmcnt(0)
    s_barrier
    ; t -> blk = t/64 (unit_local = blk/2, ks_local = blk%2), lane' = t%64 (f16, kg)
    v_lshrrev_b32 v1, 6, v0           ; blk
    v_and_b32 v2, 63, v0              ; lane'
    v_lshrrev_b32 v6, 1, v1           ; unit_local
    v_and_b32 v7, 1, v1               ; ks_local
    v_and_b32 v4, 15, v2              ; f16
    v_lshrrev_b32 v5, 4, v2           ; kg
    v_lshl_add_u32 v3, v6, 4, v4      ; f_local
    v_lshlrev_b32 v3, 7, v3
    v_lshl_add_u32 v3, v7, 6, v3
    v_lshl_add_u32 v3, v5, 4, v3
    ds_read_b128 v[8:11], v3
    s_lshr_b32 s28, s25, 4
    v_add_u32 v6, s28, v6
    v_lshlrev_b32 v6, 1, v6
    v_add_u32 v6, s7, v6
    v_lshlrev_b32 v6, 4, v6
    v_add_u32 v6, v6, v7
    s_lshr_b32 s29, s24, 5
    v_add_u32 v6, s29, v6
    v_lshlrev_b32 v6, 10, v6
    v_lshl_add_u32 v4, v2, 4, v6
    s_waitcnt lgkmcnt(0)
    buffer_store_dwordx4 v[8:11], v4, s[20:23], 0 offen
    s_endpgm
    """)
    a.label("PREP_TRD")
    a(f"s_load_dwordx2 s[42:43], s[0:1], {ARG['wd']}")
    a(f"""
    s_sub_u32 s3, s2, {base + 2*N_TG}
    s_lshr_b32 s4, s3, 3              ; ftile 0..42
    s_and_b32 s5, s3, 7               ; dtile 0..7
    s_waitcnt lgkmcnt(0)
    """)
    srd(a, 8, 42, D * F * 2)
    srd(a, 20, 40, D * F * 2, WDT_OFF)
    a(f"""
    v_lshrrev_b32 v1, 3, v0           ; frow 0..31
    v_and_b32 v2, 7, v0               ; dchunk
    s_lshl_b32 s24, s4, 5             ; f0
    s_lshl_b32 s25, s5, 6             ; d0
    v_add_u32 v3, s24, v1
    v_lshlrev_b32 v3, 10, v3
    v_lshl_add_u32 v3, v2, 4, v3
    s_lshl_b32 s27, s25, 1
    v_add_u32 v3, s27, v3
    buffer_load_dwordx4 v[8:11], v3, s[8:11], 0 offen
    v_lshlrev_b32 v5, 9, v2
    v_lshl_add_u32 v5, v1, 1, v5
    s_waitcnt vmcnt(0)
    """)
    for m in range(4):
        a(f"ds_write_b16 v5, v{8+m} offset:{(2*m)*64}")
        a(f"ds_write_b16_d16_hi v5, v{8+m} offset:{(2*m+1)*64}")
    a(f"""
    s_waitcnt lgkmcnt(0)
    s_barrier
    v_lshrrev_b32 v1, 6, v0           ; db_local
    v_and_b32 v2, 63, v0              ; lane'
    v_and_b32 v4, 15, v2              ; d16
    v_lshrrev_b32 v5, 4, v2           ; kg
    v_lshl_add_u32 v3, v1, 4, v4      ; d_local
    v_lshlrev_b32 v3, 6, v3
    v_lshl_add_u32 v3, v5, 4, v3
    ds_read_b128 v[8:11], v3
    s_lshr_b32 s28, s25, 4
    v_add_u32 v6, s28, v1
    v_mul_u32_u24 v6, 43, v6
    v_add_u32 v6, s4, v6
    v_lshlrev_b32 v6, 10, v6
    v_lshl_add_u32 v4, v2, 4, v6
    s_waitcnt lgkmcnt(0)
    buffer_store_dwordx4 v[8:11], v4, s[20:23], 0 offen
    s_endpgm
    """)
    a.label("PREP_END")
    a("s_endpgm")
    return a.text(), 72


G1_D = 3
G1_STAGE = 20 * 1024
G1_WGS = 240
G1_LDS = G1_D * G1_STAGE


def gen_gemm1():
    a = Asm()
    a(f"""
    s_cmp_ge_u32 s2, {G1_WGS}
    s_cbranch_scc1 MID_CONV
    s_load_dwordx2 s[40:41], s[0:1], {ARG['ws']}
    s_and_b32 s3, s2, 15              ; mi
    s_lshr_b32 s4, s2, 4              ; fi
    s_mul_i32 s4, s4, 6
    s_min_u32 s4, s4, 80              ; u0
    v_lshrrev_b32 v1, 6, v0
    s_nop 0
    v_readfirstlane_b32 s5, v1        ; wave
    v_and_b32 v2, 63, v0              ; lane
    v_and_b32 v3, 15, v2
    v_lshrrev_b32 v4, 4, v2
    v_lshlrev_b32 v5, 4, v2
    s_waitcnt lgkmcnt(0)
    """)
    srd(a, 8, 40, WS_USED)
    srd(a, 12, 40, S * F * 2, H_OFF)
    stamp(a)
    a("s_mul_i32 s6, s5, 5")
    for j in range(5):
        a(f"""
        s_add_u32 s7, s6, {j}             ; f
        s_lshl_b32 s30, s3, 3
        s_add_u32 s30, s30, s7
        s_lshl_b32 s30, s30, 14
        s_sub_u32 s31, s7, 8
        s_lshl_b32 s32, s4, 1
        s_add_u32 s31, s31, s32
        s_lshl_b32 s31, s31, 14           ; (u0*2 + f-8)*16*1024
        s_add_u32 s31, s31, 0x{W1T_OFF:x}
        s_cmp_lt_u32 s7, 8
        s_cselect_b32 s{20+j}, s30, s31
        s_lshl_b32 s{25+j}, s7, 10
        """)
    a("""
    s_and_b32 s33, s5, 1              ; wm
    s_lshr_b32 s34, s5, 1             ; wf
    v_lshlrev_b32 v6, 4, v2           ; lane*16
    s_lshl_b32 s35, s33, 12           ; 4*wm*1024
    v_add_u32 v7, s35, v6
    s_mul_i32 s35, s34, 6144
    s_add_u32 s35, s35, 8192
    v_add_u32 v8, s35, v6
    """)
    VX0, VW0 = 10, 16
    for st in range(G1_D):
        a(f"v_add_u32 v{VX0+st}, {st*G1_STAGE}, v7")
        a(f"v_add_u32 v{VW0+st}, {st*G1_STAGE}, v8")
    ACC = 32
    FR = ACC + 96
    for i in range(96):
        a(f"v_mov_b32 v{ACC+i}, 0")

    def issue_stage(st):
        buf = st % G1_D
        for j in range(5):
            a(f"s_add_u32 m0, s{25+j}, {buf*G1_STAGE}")
            a("s_nop 0")
            a(f"buffer_load_dwordx4 v5, s[8:11], s{20+j} offen lds")
        a("v_add_u32 v5, 0x400, v5")

    def frag_reads(st, setb):
        buf = st % G1_D
        out = []
        for i in range(4):
            out.append(f"ds_read_b128 v[{setb+4*i}:{setb+4*i+3}], v{VX0+buf} offset:{i*1024}")
        for j in range(6):
            out.append(f"ds_read_b128 v[{setb+16+4*j}:{setb+16+4*j+3}], v{VW0+buf} offset:{j*1024}")
        return out

    NK = 16
    for st in range(G1_D):
        issue_stage(st)
    a(f"s_waitcnt vmcnt({5*(G1_D-1)})")
    a("s_barrier")
    for r in frag_reads(0, FR):
        a(r)
    a("s_waitcnt lgkmcnt(0)")
    for it in range(NK):
        if it in (0, 1, 8): stamp(a)
        cur = FR + 40 * (it % 2)
        nxt = FR + 40 * ((it + 1) % 2)
        if it + 1 < NK:
            issued = min(NK, G1_D + it)
            a(f"s_waitcnt vmcnt({5*(issued-(it+2))})")
            a("s_barrier")
            if it + G1_D < NK:
                issue_stage(it + G1_D)
            reads = frag_reads(it + 1, nxt)
        else:
            reads = []
        idx = 0
        for j in range(6):
            for i in range(4):
                if idx < len(reads):
                    a(reads[idx])
                idx += 1
                ac = ACC + (j * 4 + i) * 4
                a(f"v_mfma_f32_16x16x32_bf16 v[{ac}:{ac+3}], v[{cur+16+4*j}:{cur+16+4*j+3}], "
                  f"v[{cur+4*i}:{cur+4*i+3}], v[{ac}:{ac+3}]")
        a("s_waitcnt lgkmcnt(0)")
    a("s_nop 15")
    stamp(a)
    a(f"""
    v_lshrrev_b32 v6, 1, v4           ; fg/2
    v_lshlrev_b32 v6, 8, v6           ; *16*16
    v_lshl_add_u32 v6, v3, 4, v6      ; + s16*16
    v_and_b32 v7, 1, v4
    v_lshl_add_u32 v6, v7, 3, v6      ; + (fg%2)*8
    s_lshl_b32 s31, s3, 3
    s_lshl_b32 s32, s33, 2
    s_add_u32 s31, s31, s32
    s_mul_i32 s31, s31, {43*1024}
    s_mul_i32 s32, s34, 3
    s_add_u32 s32, s32, s4            ; U0 = u0 + 3wf
    """)
    T = 20
    a("s_mov_b32 s40, 0xbfb8aa3b")
    a("s_mov_b32 s41, 0xbfb8aa3b")
    for j in range(3):
        for i in range(4):
            g = ACC + ((2 * j) * 4 + i) * 4
            u = ACC + ((2 * j + 1) * 4 + i) * 4
            a(f"v_pk_mul_f32 v[{T}:{T+1}], v[{g}:{g+1}], s[40:41]")
            a(f"v_pk_mul_f32 v[{T+2}:{T+3}], v[{g+2}:{g+3}], s[40:41]")
            for q in range(4):
                a(f"v_exp_f32 v{T+q}, v{T+q}")
            a(f"v_pk_mul_f32 v[{g}:{g+1}], v[{g}:{g+1}], v[{u}:{u+1}]")
            a(f"v_pk_mul_f32 v[{g+2}:{g+3}], v[{g+2}:{g+3}], v[{u+2}:{u+3}]")
            a(f"v_pk_add_f32 v[{T}:{T+1}], v[{T}:{T+1}], 1.0 op_sel_hi:[1,0]")
            a(f"v_pk_add_f32 v[{T+2}:{T+3}], v[{T+2}:{T+3}], 1.0 op_sel_hi:[1,0]")
            for q in range(4):
                a(f"v_rcp_f32 v{T+q}, v{T+q}")
            a(f"s_add_u32 s36, s32, {j}")
            a("s_lshr_b32 s35, s36, 1")
            a("s_lshl_b32 s35, s35, 10")
            a("s_and_b32 s36, s36, 1")
            a("s_lshl_b32 s36, s36, 9")
            a("s_add_u32 s35, s35, s36")
            a("s_add_u32 s35, s35, s31")
            a(f"s_add_u32 s35, s35, {i*43*1024}")
            a(f"v_pk_mul_f32 v[{g}:{g+1}], v[{g}:{g+1}], v[{T}:{T+1}]")
            a(f"v_pk_mul_f32 v[{g+2}:{g+3}], v[{g+2}:{g+3}], v[{T+2}:{T+3}]")
            a(f"v_cvt_pk_bf16_f32 v{g}, v{g}, v{g+1}")
            a(f"v_cvt_pk_bf16_f32 v{g+1}, v{g+2}, v{g+3}")
            a(f"buffer_store_dwordx2 v[{g}:{g+1}], v6, s[12:15], s35 offen")
    stamp(a)
    stamp_flush(a, "G1")
    a.label("G1_END")
    a("s_endpgm")
    return a.text(), FR + 80


CV_HP = 4160
CV_XL = 8 * CV_HP
CV_LDS = CV_XL + 96 * 80


def gen_conv():
    a = Asm()
    a.label("MID_CONV")
    a(f"""
    s_sub_u32 s2, s2, {G1_WGS}
    s_cmp_ge_u32 s2, {D}
    s_cbranch_scc1 CV_END
    s_load_dwordx2 s[40:41], s[0:1], {ARG['ws']}
    s_load_dwordx2 s[42:43], s[0:1], {ARG['ssm_k']}
    s_load_dwordx2 s[44:45], s[0:1], {ARG['ssm_D']}
    s_lshl_b32 s3, s2, 12             ; d*4096
    v_lshrrev_b32 v1, 6, v0
    s_nop 0
    v_readfirstlane_b32 s5, v1        ; wave
    s_waitcnt lgkmcnt(0)
    """)
    srd_s(a, 8, 42, 4096, 3)
    a(f"s_add_u32 s6, s3, 0x{KVT_OFF:x}")
    srd_s(a, 12, 40, 4096, 6)
    a(f"s_add_u32 s6, s3, 0x{Y2T_OFF:x}")
    srd_s(a, 16, 40, 4096, 6)
    srd(a, 20, 44, D * 2)
    stamp(a)
    a("""
    v_lshlrev_b32 v2, 4, v0           ; 16*t
    v_add_u32 v3, 0xffffffc0, v2      ; 16*(t-4)
    buffer_load_dwordx4 v[8:11], v3, s[8:11], 0 offen
    buffer_load_dwordx4 v[12:15], v3, s[8:11], 0 offen offset:16
    buffer_load_dwordx4 v[16:19], v2, s[12:15], 0 offen
    v_add_u32 v4, 0xfc0, v2
    buffer_load_dwordx4 v[32:35], v4, s[8:11], 0 offen
    buffer_load_dwordx4 v[36:39], v4, s[8:11], 0 offen offset:16
    s_lshl_b32 s7, s2, 1
    v_mov_b32 v5, s7
    buffer_load_ushort v60, v5, s[20:23], 0 offen
    """)
    a(f"""
    v_lshrrev_b32 v5, 2, v0
    v_mul_u32_u24 v5, 80, v5
    v_and_b32 v6, 3, v0
    v_lshl_add_u32 v5, v6, 4, v5      ; (t/4)*80 + (t%4)*16
    v_mov_b32 v28, 0
    v_mov_b32 v29, 0
    v_mov_b32 v30, 0
    v_mov_b32 v31, 0
    v_cmp_gt_u32 vcc, 128, v0
    s_and_saveexec_b64 s[30:31], vcc
    ds_write_b128 v5, v[28:31] offset:{CV_XL}
    s_mov_b64 exec, s[30:31]
    s_waitcnt vmcnt(4)
    """)

    def build(wbase, addr, off0):
        for m in range(7):
            a(f"v_alignbit_b32 v{20+m}, v{wbase+m+1}, v{wbase+m}, 16")
        for rho in range(8):
            sig = rho + 1
            if sig % 2:
                m = (sig - 1) // 2
                src = 20 + m
            else:
                src = wbase + sig // 2
            if src % 2:
                for q in range(4):
                    a(f"v_mov_b32 v{40+q}, v{src+q}")
                src = 40
            a(f"ds_write_b128 v{addr}, v[{src}:{src+3}] offset:{rho*CV_HP+off0}")

    build(8, 2, 0)
    a("s_waitcnt vmcnt(3)")
    a(f"ds_write_b128 v5, v[16:19] offset:{CV_XL+32*80}")
    a("s_waitcnt vmcnt(1)")
    a("v_cmp_gt_u32 vcc, 4, v0")
    a("s_and_saveexec_b64 s[30:31], vcc")
    build(32, 2, 4096)
    a("s_mov_b64 exec, s[30:31]")
    a(f"""
    v_and_b32 v1, 63, v0              ; lane
    v_and_b32 v2, 31, v1              ; b / n
    v_lshrrev_b32 v3, 5, v1
    v_and_b32 v4, 7, v2               ; rho
    v_mul_u32_u24 v4, {CV_HP}, v4
    v_lshrrev_b32 v5, 3, v2
    v_lshl_add_u32 v4, v5, 4, v4
    v_lshlrev_b32 v5, 4, v3
    v_sub_u32 v4, v4, v5              ; -16kg
    s_lshl_b32 s6, s5, 6
    s_add_u32 s6, s6, 16              ; 64w + 48 - 32
    v_add_u32 v4, s6, v4              ; vA
    v_mul_u32_u24 v6, 80, v2
    v_add_u32 v6, v6, v5              ; n*80 + kg*16
    s_mul_i32 s6, s5, 80
    s_sub_u32 s6, {CV_XL + (32-60)*80}, s6
    v_add_u32 v6, s6, v6              ; vB
    s_waitcnt lgkmcnt(0)
    s_barrier
    """)
    stamp(a)
    ACC0, ACC1 = 64, 80
    for i in range(32):
        a(f"v_mov_b32 v{ACC0+i}, 0")
    steps = [(i, ks) for i in range(16) for ks in range(2)]
    FRB = 96
    def reads(n):
        i, ks = steps[n]
        fb = FRB + 12 * (n % 3)
        r = [f"ds_read_b128 v[{fb}:{fb+3}], v4 offset:{256*i + 32*(1-ks)}"]
        r.append(f"ds_read_b128 v[{fb+4}:{fb+7}], v6 offset:{(15-i)*320 + ks*32 + 2560}")
        if i < 8:
            r.append(f"ds_read_b128 v[{fb+8}:{fb+11}], v6 offset:{(15-i)*320 + ks*32}")
        return r
    for r in reads(0): a(r)
    for r in reads(1): a(r)
    for n in range(len(steps)):
        if n + 2 < len(steps):
            nx = reads(n + 2)
            for r in nx: a(r)
            a(f"s_waitcnt lgkmcnt({len(nx) + len(reads(n+1))})")
        elif n + 1 < len(steps):
            a(f"s_waitcnt lgkmcnt({len(reads(n+1))})")
        else:
            a("s_waitcnt lgkmcnt(0)")
        i, ks = steps[n]
        fb = FRB + 12 * (n % 3)
        a(f"v_mfma_f32_32x32x16_bf16 v[{ACC1}:{ACC1+15}], v[{fb}:{fb+3}], v[{fb+4}:{fb+7}], v[{ACC1}:{ACC1+15}]")
        if i < 8:
            a(f"v_mfma_f32_32x32x16_bf16 v[{ACC0}:{ACC0+15}], v[{fb}:{fb+3}], v[{fb+8}:{fb+11}], v[{ACC0}:{ACC0+15}]")
    a("s_nop 15")
    a("s_nop 3")
    stamp(a)
    a("s_barrier")
    a("""
    v_lshlrev_b32 v7, 4, v1
    s_lshl_b32 s6, s5, 13
    v_add_u32 v8, s6, v7
    """)
    for q in range(8):
        a(f"ds_write_b128 v8, v[{ACC0+4*q}:{ACC0+4*q+3}] offset:{q*1024}")
    a("s_waitcnt lgkmcnt(0)")
    a("s_barrier")
    a("""
    s_lshl_b32 s6, s5, 11             ; q0*1024 = 2w*1024
    v_add_u32 v8, s6, v7
    """)
    for qq in range(2):
        for p in range(4):
            a(f"ds_read_b128 v[{96+16*qq+4*p}:{96+16*qq+4*p+3}], v8 offset:{p*8192+qq*1024}")
    a(f"""
    s_lshr_b32 s6, s5, 1
    s_mul_i32 s6, s6, 2560
    s_and_b32 s7, s5, 1
    s_lshl_b32 s7, s7, 5
    s_add_u32 s6, s6, s7
    s_add_u32 s6, s6, {CV_XL + 32*80 + 8}
    v_mul_u32_u24 v9, 80, v2
    v_lshlrev_b32 v10, 3, v3
    v_sub_u32 v9, v9, v10
    v_add_u32 v9, s6, v9
    ds_read_b64 v[56:57], v9
    ds_read_b64 v[58:59], v9 offset:16
    s_waitcnt lgkmcnt(0)
    s_waitcnt vmcnt(0)
    v_lshlrev_b32 v60, 16, v60
    """)
    a("""
    s_lshr_b32 s6, s5, 1
    s_lshl_b32 s6, s6, 11
    s_and_b32 s7, s5, 1
    s_lshl_b32 s7, s7, 5
    s_add_u32 s6, s6, s7
    v_lshlrev_b32 v11, 6, v2
    v_lshl_add_u32 v11, v3, 3, v11
    v_add_u32 v11, s6, v11
    """)
    for qq in range(2):
        y = 96 + 16 * qq
        for r in range(4):
            a(f"v_add_f32 v{y+r}, v{y+r}, v{y+4+r}")
            a(f"v_add_f32 v{y+8+r}, v{y+8+r}, v{y+12+r}")
            a(f"v_add_f32 v{y+r}, v{y+r}, v{y+8+r}")
        round2(a, y, y + 1, 44)
        round2(a, y + 2, y + 3, 44)
        dA, dB = 56 + 2 * qq, 57 + 2 * qq
        unpack2(a, 48, 49, dA)
        unpack2(a, 50, 51, dB)
        for t in (48, 49, 50, 51):
            a(f"v_mul_f32 v{t}, v{t}, v60")
        round2(a, 48, 49, 44)
        round2(a, 50, 51, 44)
        a(f"v_add_f32 v{y}, v{y}, v51")
        a(f"v_add_f32 v{y+1}, v{y+1}, v50")
        a(f"v_add_f32 v{y+2}, v{y+2}, v49")
        a(f"v_add_f32 v{y+3}, v{y+3}, v48")
        a(f"v_cvt_pk_bf16_f32 v{52}, v{y}, v{y+1}")
        a(f"v_cvt_pk_bf16_f32 v{53}, v{y+2}, v{y+3}")
        a(f"buffer_store_dwordx2 v[52:53], v11, s[16:19], 0 offen offset:{16*qq}")
        a("s_nop 0")
    stamp(a)
    stamp_flush(a, "CV")
    a.label("CV_END")
    a("s_endpgm")
    return a.text(), 132


G2_PP = 272
G2_PW = 64 * G2_PP
G2_YL = 0
G2_YP = 144
G2_P0 = 64 * G2_YP
G2_LDS = G2_P0 + 4 * G2_PW


def gen_gemm2():
    a = Asm()
    a(f"""
    s_cmp_ge_u32 s2, 256
    s_cbranch_scc1 G2_END
    s_load_dwordx2 s[40:41], s[0:1], {ARG['ws']}
    s_load_dwordx2 s[42:43], s[0:1], {ARG['q']}
    s_load_dwordx2 s[44:45], s[0:1], {ARG['out']}
    s_and_b32 s3, s2, 31              ; si
    s_lshr_b32 s4, s2, 5              ; di
    v_lshrrev_b32 v1, 6, v0
    s_nop 0
    v_readfirstlane_b32 s5, v1        ; wave
    v_and_b32 v2, 63, v0
    v_and_b32 v3, 15, v2
    v_lshrrev_b32 v4, 4, v2
    s_waitcnt lgkmcnt(0)
    """)
    srd(a, 8, 40, S * F * 2, H_OFF)
    srd(a, 12, 40, D * F * 2, WDT_OFF)
    srd(a, 16, 40, S * D * 2, Y2T_OFF)
    srd(a, 20, 40, S * D * 2, XN_OFF)
    srd(a, 24, 42, S * D * 2)
    srd(a, 28, 44, S * D * 2)
    stamp(a)
    a(f"""
    s_movk_i32 s34, {F*2}
    s_lshl_b32 s35, s3, 6             ; s0
    s_lshl_b32 s36, s4, 6             ; d0
    v_lshlrev_b32 v7, 4, v2           ; lane*16
    s_mul_i32 s38, s3, {4*43*1024}
    v_add_u32 v5, s38, v7
    s_mul_i32 s38, s4, {4*43*1024}
    v_add_u32 v6, s38, v7
    s_mul_i32 s37, s5, {11*1024}
    """)
    for i in range(1, 4):
        a(f"v_add_u32 v{8+i}, {i*43*1024}, v5")
        a(f"v_add_u32 v{12+i}, {i*43*1024}, v6")
    a("v_mov_b32 v8, v5")
    a("v_mov_b32 v12, v6")
    a(f"""
    v_lshrrev_b32 v16, 2, v0
    v_and_b32 v17, 3, v0
    v_add_u32 v18, s36, v16
    v_lshlrev_b32 v18, 12, v18
    v_lshl_add_u32 v18, v17, 5, v18
    s_lshl_b32 s38, s35, 1
    v_add_u32 v18, s38, v18
    buffer_load_dwordx4 v[20:23], v18, s[16:19], 0 offen
    buffer_load_dwordx4 v[24:27], v18, s[16:19], 0 offen offset:16
    v_mul_u32_u24 v19, {G2_YP}, v16
    v_lshl_add_u32 v19, v17, 5, v19
    """)
    a("""
    v_lshrrev_b32 v28, 3, v0
    v_and_b32 v29, 7, v0
    v_add_u32 v30, s35, v28
    v_lshlrev_b32 v30, 10, v30
    v_lshl_add_u32 v30, v29, 4, v30
    s_lshl_b32 s38, s36, 1
    v_add_u32 v30, s38, v30                ; x offset
    v_add_u32 v31, s35, v28
    v_lshrrev_b32 v7, 4, v31
    v_lshlrev_b32 v7, 14, v7
    v_and_b32 v31, 15, v31
    v_lshl_add_u32 v7, v31, 4, v7
    v_lshrrev_b32 v31, 2, v29
    s_lshr_b32 s38, s36, 5
    v_add_u32 v31, s38, v31
    v_lshl_add_u32 v7, v31, 10, v7
    v_and_b32 v31, 3, v29
    v_lshl_add_u32 v7, v31, 8, v7
    buffer_load_dwordx4 v[224:227], v30, s[24:27], 0 offen
    buffer_load_dwordx4 v[228:231], v7, s[20:23], 0 offen
    v_add_u32 v30, 0x8000, v30
    v_add_u32 v7, 0x8000, v7
    buffer_load_dwordx4 v[232:235], v30, s[24:27], 0 offen
    buffer_load_dwordx4 v[236:239], v7, s[20:23], 0 offen
    """)
    ACC = 32
    FR = 96
    NS = 4
    for i in range(64):
        a(f"v_mov_b32 v{ACC+i}, 0")
    def loads(step):
        fb = FR + 32 * (step % NS)
        for i in range(4):
            a(f"buffer_load_dwordx4 v[{fb+4*i}:{fb+4*i+3}], v{8+i}, s[8:11], s37 offen offset:{(step%4)*1024}")
            a(f"buffer_load_dwordx4 v[{fb+16+4*i}:{fb+16+4*i+3}], v{12+i}, s[12:15], s37 offen offset:{(step%4)*1024}")
        if step % 4 == 3:
            a("s_add_u32 s37, s37, 4096")
    for st in range(NS - 1):
        loads(st)
    NST = 11
    for st in range(NST):
        if st in (1, 6): stamp(a)
        if st + NS - 1 < NST:
            loads(st + NS - 1)
            a(f"s_waitcnt vmcnt({8*(NS-1)})")
        else:
            a(f"s_waitcnt vmcnt({8*(NST-1-st)})")
        if st == NST - 1:
            a("s_cmp_eq_u32 s5, 3")
            a("s_cbranch_scc1 G2_SKIP")
        fb = FR + 32 * (st % NS)
        for db in range(4):
            for sb in range(4):
                ac = ACC + (db * 4 + sb) * 4
                a(f"v_mfma_f32_16x16x32_bf16 v[{ac}:{ac+3}], v[{fb+16+4*db}:{fb+16+4*db+3}], "
                  f"v[{fb+4*sb}:{fb+4*sb+3}], v[{ac}:{ac+3}]")
    a.label("G2_SKIP")
    a("s_nop 15")
    stamp(a)
    a(f"ds_write_b128 v19, v[20:23] offset:{G2_YL}")
    a(f"ds_write_b128 v19, v[24:27] offset:{G2_YL+16}")
    a(f"""
    v_mul_u32_u24 v5, {G2_PP}, v3
    v_lshl_add_u32 v5, v4, 4, v5
    s_mul_i32 s38, s5, {G2_PW}
    s_add_u32 s38, s38, {G2_P0}
    v_add_u32 v5, s38, v5
    """)
    for db in range(4):
        for sb in range(4):
            ac = ACC + (db * 4 + sb) * 4
            a(f"ds_write_b128 v5, v[{ac}:{ac+3}] offset:{sb*16*G2_PP + db*64}")
    a("s_waitcnt lgkmcnt(0)")
    stamp(a)
    a("s_barrier")
    stamp(a)
    a(f"""
    v_lshrrev_b32 v1, 3, v0
    v_and_b32 v2, 7, v0
    v_mul_u32_u24 v3, {G2_PP}, v1
    v_lshl_add_u32 v3, v2, 5, v3
    v_add_u32 v3, {G2_P0}, v3
    v_add_u32 v7, {2*G2_PW}, v3
    v_mul_u32_u24 v4, {8*G2_YP}, v2
    v_lshl_add_u32 v4, v1, 1, v4          ; y2 addr
    v_add_u32 v5, s35, v1
    v_lshlrev_b32 v5, 10, v5
    v_lshl_add_u32 v5, v2, 4, v5
    s_lshl_b32 s38, s36, 1
    v_add_u32 v5, s38, v5
    """)
    for p in range(2):
        a(f"v_add_u32 v6, {p*32*1024}, v5")
        for w in range(4):
            ar = 3 if w < 2 else 7
            a(f"ds_read_b128 v[{32+8*w}:{35+8*w}], v{ar} offset:{(w%2)*G2_PW + p*32*G2_PP}")
            a(f"ds_read_b128 v[{36+8*w}:{39+8*w}], v{ar} offset:{(w%2)*G2_PW + p*32*G2_PP + 16}")
        for i in range(8):
            a(f"ds_read_u16 v{64+i}, v4 offset:{G2_YL + i*G2_YP + p*64}")
        a("s_waitcnt lgkmcnt(0)")
        for i in range(8):
            a(f"v_add_f32 v{32+i}, v{32+i}, v{40+i}")
            a(f"v_add_f32 v{48+i}, v{48+i}, v{56+i}")
            a(f"v_add_f32 v{32+i}, v{32+i}, v{48+i}")
            a(f"v_lshlrev_b32 v{64+i}, 16, v{64+i}")
        for m in range(4):
            unpack2(a, 72 + 2 * m, 73 + 2 * m, 224 + 8 * p + m)
            unpack2(a, 80 + 2 * m, 81 + 2 * m, 228 + 8 * p + m)
        for m in range(4):
            e0, e1 = 2 * m, 2 * m + 1
            a(f"v_mul_f32 v{80+e0}, v{80+e0}, v{64+e0}")
            a(f"v_mul_f32 v{80+e1}, v{80+e1}, v{64+e1}")
            round2(a, 80 + e0, 80 + e1, 88)
            a(f"v_add_f32 v{72+e0}, v{72+e0}, v{80+e0}")
            a(f"v_add_f32 v{72+e1}, v{72+e1}, v{80+e1}")
            round2(a, 72 + e0, 72 + e1, 88)
            round2(a, 32 + e0, 32 + e1, 88)
            a(f"v_add_f32 v{72+e0}, v{72+e0}, v{32+e0}")
            a(f"v_add_f32 v{72+e1}, v{72+e1}, v{32+e1}")
            a(f"v_cvt_pk_bf16_f32 v{8+m}, v{72+e0}, v{72+e1}")
        a("buffer_store_dwordx4 v[8:11], v6, s[28:31], 0 offen")
        a("s_nop 1")
    stamp(a)
    stamp_flush(a, "G2")
    a.label("G2_END")
    a("s_endpgm")
    return a.text(), 240


def main():
    hdr = open(os.path.join(os.path.dirname(__file__), "header.txt")).read()
    g1, v1 = gen_gemm1()
    cv, v2 = gen_conv()
    kernels = [("prep_kernel", gen_prep(), (PREP_WGS, 256, 8192)),
               ("mid_kernel", (g1 + cv, max(v1, v2)), (G1_WGS + D, 256, max(G1_LDS, CV_LDS))),
               ("gemm2_kernel", gen_gemm2(), (256, 256, G2_LDS))]
    out = hdr
    for n, _, (g, b, l) in kernels:
        out += f"; @launch kernel={n} grid=({g},1,1) block=({b},1,1) lds={l}\n"
    out += '.amdgcn_target "amdgcn-amd-amdhsa--gfx950"\n.text\n'
    for n, (body, _), _ in kernels:
        out += kernel_header(n) + body
    out += '.section .rodata,"a"\n'
    for n, (_, vg), _ in kernels:
        out += kernel_desc(n, 256 if STAMPS else vg)
    dst = sys.argv[1] if len(sys.argv) > 1 else f"cdna_kernels/{NAME}.s"
    open(dst, "w").write(out)
    print("wrote", dst, len(out))


if __name__ == "__main__":
    main()
```

```python
import sys, os

NAME = "parallel_sum__ssm_conv_h3__swiglu_ffn__prompt"

S, D, F = 2048, 512, 1376
ARG = dict(q=0, k=8, v=16, shift_k=24, ssm_k=32, ssm_D=40, bx=48, wg=56, wu=64, wd=72,
           out=80, dbg=88, ws=96)
XN_OFF  = 0x000000
KVT_OFF = 0x200000
W1T_OFF = 0x400000
WDT_OFF = 0x700000
H_OFF   = 0x900000
Y2T_OFF = 0xF00000
WS_USED = 0x1100000
SRD3 = 0x00020000


STFLAGS = os.environ.get("STFLAGS", "")


class Asm:
    def __init__(self):
        self.L = []
    def __call__(self, fmt, *a):
        for line in fmt.strip().split("\n"):
            line = line.strip()
            if line:
                if line.startswith("buffer_store") and "sc1" not in line and STFLAGS:
                    line = line.split(";")[0].rstrip() + " " + STFLAGS
                self.L.append("  " + line)
    def label(self, l):
        self.L.append(l + ":")
    def text(self):
        return "\n".join(self.L) + "\n"


def srd(a, dst, ptr, nbytes, off=0):
    if off:
        a(f"s_add_u32 s{dst}, s{ptr}, 0x{off:x}")
        a(f"s_addc_u32 s{dst+1}, s{ptr+1}, 0")
    else:
        a(f"s_mov_b32 s{dst}, s{ptr}")
        a(f"s_mov_b32 s{dst+1}, s{ptr+1}")
    a(f"s_and_b32 s{dst+1}, s{dst+1}, 0xffff")
    a(f"s_mov_b32 s{dst+2}, 0x{nbytes:x}")
    a(f"s_mov_b32 s{dst+3}, 0x{SRD3:x}")


def srd_s(a, dst, ptr, nbytes, soff):
    a(f"s_add_u32 s{dst}, s{ptr}, s{soff}")
    a(f"s_addc_u32 s{dst+1}, s{ptr+1}, 0")
    a(f"s_and_b32 s{dst+1}, s{dst+1}, 0xffff")
    a(f"s_mov_b32 s{dst+2}, 0x{nbytes:x}")
    a(f"s_mov_b32 s{dst+3}, 0x{SRD3:x}")


def unpack2(a, lo, hi, src):
    a(f"v_lshlrev_b32 v{lo}, 16, v{src}")
    a(f"v_and_b32 v{hi}, 0xffff0000, v{src}")


def round2(a, x, y, t):
    a(f"v_cvt_pk_bf16_f32 v{t}, v{x}, v{y}")
    a(f"v_lshlrev_b32 v{x}, 16, v{t}")
    a(f"v_and_b32 v{y}, 0xffff0000, v{t}")


def round1(a, x, t):
    a(f"v_cvt_pk_bf16_f32 v{t}, v{x}, v{x}")
    a(f"v_lshlrev_b32 v{x}, 16, v{t}")


STAMPS = os.environ.get("STAMPS", "0") == "1"
_stamp_n = [0]


def stamp(a, real=False):
    if not STAMPS:
        return
    i = _stamp_n[0]
    _stamp_n[0] += 1
    REAL = os.environ.get("REALT", "0") == "1"
    a(f"s_mem{'real' if REAL else ''}time s[{70+2*i}:{71+2*i}]")
    a("s_waitcnt lgkmcnt(0)")


def stamp_flush(a, tag, only=None, slot=0):
    if not STAMPS:
        return
    n = _stamp_n[0]
    _stamp_n[0] = 0
    a(f"""
    s_load_dwordx2 s[66:67], s[0:1], {ARG['dbg']}
    s_waitcnt lgkmcnt(0)
    """)
    srd(a, 60, 66, 256)
    a(f"""
    v_cmp_gt_u32 vcc, 64, v0
    s_and_saveexec_b64 s[64:65], vcc
    s_cbranch_execz STF_{tag}
    """)
    if only is None:
        a(f"""
        s_and_b32 s68, s2, 63
        s_cmp_lg_u32 s68, 0
        s_cbranch_scc1 STF_{tag}
        s_lshr_b32 s68, s2, 6
        s_mul_i32 s68, s68, 64
        """)
    else:
        a(f"""
        s_cmp_lg_u32 s2, {only}
        s_cbranch_scc1 STF_{tag}
        s_mov_b32 s68, {slot*64}
        """)
    for i in range(n):
        a(f"v_mov_b32 v250, s{70+2*i}")
        a(f"v_mov_b32 v251, {4*i}")
        a("buffer_store_dword v250, v251, s[60:63], s68 offen")
    a.label(f"STF_{tag}")
    a("s_mov_b64 exec, s[64:65]")


WGST = os.environ.get("WGST", "0") == "1"


def wg_begin(a):
    if WGST:
        a("s_memrealtime s[94:95]")


def wg_end(a, k, tag):
    if not WGST:
        return
    a(f"""
    s_waitcnt vmcnt(0) lgkmcnt(0)
    s_memrealtime s[92:93]
    s_load_dwordx2 s[66:67], s[0:1], {ARG['ws']}
    s_waitcnt lgkmcnt(0)
    """)
    srd(a, 60, 66, 0x1100000)
    a(f"""
    v_cmp_gt_u32 vcc, 1, v0
    s_and_saveexec_b64 s[64:65], vcc
    s_cbranch_execz WGE_{tag}
    v_mov_b32 v250, s94
    v_mov_b32 v251, s92
    s_lshl_b32 s68, s96, 3
    s_add_u32 s68, s68, {0x1000000 + k*0x4000}
    v_mov_b32 v252, 0
    buffer_store_dwordx2 v[250:251], v252, s[60:63], s68 offen
    """)
    a.label(f"WGE_{tag}")
    a("s_mov_b64 exec, s[64:65]")


def kernel_header(name):
    return (f".globl {name}\n.p2align 8\n.type {name},@function\n{name}:\n" + ("s_memrealtime s[94:95]\ns_mov_b32 s96, s2\n" if WGST else ""))


def kernel_desc(name, vgpr, sgpr=102):
    acc = (vgpr + 3) // 4 * 4
    return (f".p2align 6\n.amdhsa_kernel {name}\n"
            f"  .amdhsa_next_free_vgpr {vgpr}\n"
            f"  .amdhsa_next_free_sgpr {sgpr}\n"
            f"  .amdhsa_accum_offset {acc}\n"
            f"  .amdhsa_group_segment_fixed_size 0\n"
            f"  .amdhsa_kernarg_size 104\n"
            f"  .amdhsa_user_sgpr_count 2\n"
            f"  .amdhsa_user_sgpr_kernarg_segment_ptr 1\n"
            f"  .amdhsa_system_sgpr_workgroup_id_x 1\n"
            f".end_amdhsa_kernel\n")


N_LN, N_KV, N_TG, N_TD = 512, 256, 344, 344
PREP_WGS = N_LN + N_KV + 2 * N_TG + N_TD


def wave_allreduce(a, x, t, addr_regs):
    for r in addr_regs:
        a(f"ds_bpermute_b32 v{t}, v{r}, v{x}")
        a("s_waitcnt lgkmcnt(0)")
        a(f"v_add_f32 v{x}, v{x}, v{t}")


def wave_allreduce_dpp(a, x):
    for mode in ("quad_perm:[1,0,3,2]", "quad_perm:[2,3,0,1]", "row_half_mirror", "row_mirror"):
        a("s_nop 1")
        a(f"v_add_f32_dpp v{x}, v{x}, v{x} {mode} row_mask:0xf bank_mask:0xf")
    a("s_nop 0")
    for i in range(4):
        a(f"v_readlane_b32 s{60+i}, v{x}, {16*i}")
    a("s_nop 1")
    a(f"v_mov_b32 v{x}, s60")
    for i in range(1, 4):
        a(f"v_add_f32 v{x}, s{60+i}, v{x}")


def gen_prep():
    a = Asm()
    a(f"""
    s_cmp_ge_u32 s2, {PREP_WGS}
    s_cbranch_scc1 PREP_END
    s_load_dwordx2 s[40:41], s[0:1], {ARG['ws']}
    s_cmp_ge_u32 s2, {N_LN}
    s_cbranch_scc1 PREP_NOT_LN
    """)
    ONLY = os.environ.get("PREP_ONLY", "")
    if ONLY and 'ln' not in ONLY: a("s_branch PREP_END")
    a(f"s_load_dwordx2 s[42:43], s[0:1], {ARG['q']}")
    a("""
    v_lshrrev_b32 v1, 6, v0
    v_and_b32 v2, 63, v0
    s_lshl_b32 s3, s2, 2
    v_add_u32 v1, s3, v1
    v_lshlrev_b32 v1, 10, v1
    v_lshl_add_u32 v1, v2, 4, v1
    v_lshlrev_b32 v2, 2, v2
    """)
    ad = list(range(40, 46))
    for i, m in enumerate([1, 2, 4, 8, 16, 32]):
        a(f"v_xor_b32 v{ad[i]}, {m*4}, v2")
    a("s_waitcnt lgkmcnt(0)")
    srd(a, 8, 42, S * D * 2)
    srd(a, 12, 40, S * D * 2, XN_OFF)
    stamp(a)
    a("buffer_load_dwordx4 v[4:7], v1, s[8:11], 0 offen")
    a("s_waitcnt vmcnt(0)")
    stamp(a)
    for i in range(4):
        unpack2(a, 8 + 2 * i, 9 + 2 * i, 4 + i)
    a("""
    v_add_f32 v16, v8, v9
    v_add_f32 v17, v10, v11
    v_add_f32 v18, v12, v13
    v_add_f32 v19, v14, v15
    v_add_f32 v16, v16, v17
    v_add_f32 v18, v18, v19
    v_add_f32 v16, v16, v18
    """)
    wave_allreduce_dpp(a, 16)
    a("v_mul_f32 v16, 0x3b000000, v16")
    for i in range(8):
        a(f"v_sub_f32 v{20+i}, v{8+i}, v16")
    a("v_mul_f32 v17, v20, v20")
    for i in range(1, 8):
        a(f"v_fmac_f32 v17, v{20+i}, v{20+i}")
    wave_allreduce_dpp(a, 17)
    a("v_mul_f32 v17, 0x3b000000, v17")
    round2(a, 16, 17, 18)
    a("v_add_f32 v17, 0x3727c5ac, v17")
    round1(a, 17, 18)
    a("v_sqrt_f32 v17, v17")
    a("s_nop 0")
    round1(a, 17, 18)
    a("v_rcp_f32 v19, v17")
    for i in range(8):
        a(f"v_sub_f32 v{8+i}, v{8+i}, v16")
    for i in range(4):
        round2(a, 8 + 2 * i, 9 + 2 * i, 18)
    for i in range(8):
        x = 8 + i
        a(f"v_mul_f32 v28, v{x}, v19")
        a(f"v_fma_f32 v29, -v28, v17, v{x}")
        a(f"v_fma_f32 v{x}, v29, v19, v28")
    for i in range(4):
        a(f"v_cvt_pk_bf16_f32 v{4+i}, v{8+2*i}, v{9+2*i}")
    a("""
    v_lshrrev_b32 v30, 10, v1          ; row
    v_lshrrev_b32 v31, 4, v30
    v_lshlrev_b32 v31, 14, v31         ; (r/16)*16*1024
    v_and_b32 v30, 15, v30
    v_lshl_add_u32 v31, v30, 4, v31    ; + (r%16)*16
    v_and_b32 v30, 63, v0
    v_lshrrev_b32 v32, 2, v30
    v_lshl_add_u32 v31, v32, 10, v31   ; + (l/4)*1024
    v_and_b32 v30, 3, v30
    v_lshl_add_u32 v31, v30, 8, v31    ; + (l%4)*256
    """)
    a("buffer_store_dwordx4 v[4:7], v31, s[12:15], 0 offen")
    stamp(a); stamp_flush(a, "P0", 100, 0); wg_end(a, 0, "P0")
    a("s_endpgm")

    a.label("PREP_NOT_LN")
    a(f"s_cmp_ge_u32 s2, {N_LN + N_KV}")
    a("s_cbranch_scc1 PREP_TR")
    if ONLY and 'kv' not in ONLY: a("s_branch PREP_END")
    a(f"s_load_dwordx2 s[42:43], s[0:1], {ARG['k']}")
    a(f"s_load_dwordx2 s[44:45], s[0:1], {ARG['v']}")
    a(f"s_load_dwordx2 s[46:47], s[0:1], {ARG['shift_k']}")
    a(f"""
    s_sub_u32 s3, s2, {N_LN}
    s_lshr_b32 s4, s3, 3          ; stile
    s_and_b32 s5, s3, 7           ; dtile
    s_lshl_b32 s4, s4, 6          ; s0
    s_lshl_b32 s5, s5, 6          ; d0
    v_and_b32 v1, 7, v0           ; dch
    v_lshrrev_b32 v2, 3, v0       ; sr 0..31
    v_lshlrev_b32 v3, 3, v1
    v_add_u32 v3, s5, v3          ; d = d0 + 8*dch
    v_lshlrev_b32 v4, 3, v3
    v_add_u32 v5, s4, v2          ; s = s0 + sr
    v_lshlrev_b32 v5, 10, v5
    v_lshl_add_u32 v5, v3, 1, v5
    s_waitcnt lgkmcnt(0)
    """)
    srd(a, 8, 42, S * D * 2)
    srd(a, 12, 44, S * D * 2)
    srd(a, 16, 46, D * 4 * 2)
    srd(a, 20, 40, S * D * 2, KVT_OFF)
    stamp(a)
    for i in range(4):
        a(f"buffer_load_dwordx4 v[{16+4*i}:{19+4*i}], v4, s[16:19], 0 offen offset:{16*i}")
    for p in range(2):
        KB = 32 + 20 * p
        a(f"v_add_u32 v7, {p*32*1024}, v5")
        a(f"buffer_load_dwordx4 v[{KB}:{KB+3}], v7, s[8:11], 0 offen")
        a("v_add_u32 v8, 0xfffffc00, v7")
        a(f"buffer_load_dwordx4 v[{KB+4}:{KB+7}], v8, s[8:11], 0 offen")
        a("v_add_u32 v8, 0xfffff800, v7")
        a(f"buffer_load_dwordx4 v[{KB+8}:{KB+11}], v8, s[8:11], 0 offen")
        a("v_add_u32 v8, 0xfffff400, v7")
        a(f"buffer_load_dwordx4 v[{KB+12}:{KB+15}], v8, s[8:11], 0 offen")
        a(f"buffer_load_dwordx4 v[{KB+16}:{KB+19}], v7, s[12:15], 0 offen")
    a("""
    v_xor_b32 v6, 7, v2
    v_lshlrev_b32 v6, 1, v6
    v_lshl_add_u32 v6, v1, 10, v6
    """)
    a("s_waitcnt vmcnt(10)")
    for p in range(2):
        a(f"s_waitcnt vmcnt({5*(1-p)})")
        KB = 32 + 20 * p
        for m in range(4):
            acc0, acc1, t0, t1, tt = 9, 10, 11, 12, 13
            first = True
            for j in (3, 2, 1, 0):
                unpack2(a, t0, t1, KB + 4 * j + m)
                for (tt_, e) in ((t0, 0), (t1, 1)):
                    wd_ = 16 + 4 * m + 2 * e + j // 2
                    if j % 2 == 0:
                        a(f"v_lshlrev_b32 v{tt}, 16, v{wd_}")
                    else:
                        a(f"v_and_b32 v{tt}, 0xffff0000, v{wd_}")
                    a(f"v_mul_f32 v{tt_}, v{tt_}, v{tt}")
                if first:
                    round2(a, t0, t1, tt)
                    a(f"v_mov_b32 v{acc0}, v{t0}")
                    a(f"v_mov_b32 v{acc1}, v{t1}")
                    first = False
                else:
                    round2(a, t0, t1, tt)
                    a(f"v_add_f32 v{acc0}, v{acc0}, v{t0}")
                    a(f"v_add_f32 v{acc1}, v{acc1}, v{t1}")
                    round2(a, acc0, acc1, tt)
            unpack2(a, t0, t1, KB + 16 + m)
            a(f"v_mul_f32 v{acc0}, v{acc0}, v{t0}")
            a(f"v_mul_f32 v{acc1}, v{acc1}, v{t1}")
            a(f"v_cvt_pk_bf16_f32 v{tt}, v{acc0}, v{acc1}")
            a(f"ds_write_b16 v6, v{tt} offset:{p*64 + (2*m)*128}")
            a(f"ds_write_b16_d16_hi v6, v{tt} offset:{p*64 + (2*m+1)*128}")
    a("s_waitcnt lgkmcnt(0)")
    a("s_barrier")
    a("""
    v_lshrrev_b32 v1, 3, v0       ; d_local 0..31
    v_and_b32 v2, 7, v0           ; chunk
    v_lshlrev_b32 v3, 7, v1
    v_lshl_add_u32 v3, v2, 4, v3
    v_add_u32 v4, s5, v1
    v_lshlrev_b32 v4, 12, v4      ; (d0+d_local)*4096
    v_lshl_add_u32 v4, v2, 4, v4
    s_lshl_b32 s6, s4, 1
    v_add_u32 v4, s6, v4
    ds_read_b128 v[8:11], v3
    ds_read_b128 v[12:15], v3 offset:4096
    v_add_u32 v5, 0x20000, v4
    s_waitcnt lgkmcnt(1)
    buffer_store_dwordx4 v[8:11], v4, s[20:23], 0 offen
    s_waitcnt lgkmcnt(0)
    buffer_store_dwordx4 v[12:15], v5, s[20:23], 0 offen
    """)
    stamp(a); stamp_flush(a, "P1", 600, 1); wg_end(a, 0, "P1")
    a("s_endpgm")

    a.label("PREP_TR")
    base = N_LN + N_KV
    a(f"s_cmp_ge_u32 s2, {base + 2*N_TG}")
    a("s_cbranch_scc1 PREP_TRD")
    if ONLY and 'tg' not in ONLY: a("s_branch PREP_END")
    a(f"s_load_dwordx2 s[42:43], s[0:1], {ARG['wg']}")
    a(f"s_load_dwordx2 s[44:45], s[0:1], {ARG['wu']}")
    a(f"""
    s_sub_u32 s3, s2, {base}
    s_cmp_ge_u32 s3, {N_TG}
    s_cselect_b32 s7, 1, 0            ; is_up
    s_cselect_b32 s6, {N_TG}, 0
    s_sub_u32 s3, s3, s6
    s_lshr_b32 s4, s3, 3              ; ftile 0..42
    s_and_b32 s5, s3, 7               ; ktile 0..7
    s_waitcnt lgkmcnt(0)
    s_cmp_eq_u32 s7, 1
    s_cselect_b32 s42, s44, s42
    s_cselect_b32 s43, s45, s43
    """)
    srd(a, 8, 42, D * F * 2)
    srd(a, 20, 40, 2 * F * D * 2, W1T_OFF)
    a(f"""
    v_lshrrev_b32 v1, 2, v0           ; krow 0..63
    v_and_b32 v2, 3, v0               ; fchunk
    s_lshl_b32 s8+0, s8+0, 0
    """.replace("s_lshl_b32 s8+0, s8+0, 0", ""))
    a(f"""
    s_lshl_b32 s24, s5, 6             ; k0
    s_lshl_b32 s25, s4, 5             ; f0
    v_add_u32 v3, s24, v1
    s_movk_i32 s26, {F*2}
    v_mul_lo_u32 v3, v3, s26
    v_lshlrev_b32 v4, 4, v2
    v_add_u32 v3, v3, v4
    s_lshl_b32 s27, s25, 1
    v_add_u32 v3, s27, v3
    buffer_load_dwordx4 v[8:11], v3, s[8:11], 0 offen
    v_lshlrev_b32 v5, 10, v2
    v_lshl_add_u32 v5, v1, 1, v5
    s_waitcnt vmcnt(0)
    """)
    for m in range(4):
        a(f"ds_write_b16 v5, v{8+m} offset:{(2*m)*128}")
        a(f"ds_write_b16_d16_hi v5, v{8+m} offset:{(2*m+1)*128}")
    a("""
    s_waitcnt lgkmcnt(0)
    s_barrier
    ; t -> blk = t/64 (unit_local = blk/2, ks_local = blk%2), lane' = t%64 (f16, kg)
    v_lshrrev_b32 v1, 6, v0           ; blk
    v_and_b32 v2, 63, v0              ; lane'
    v_lshrrev_b32 v6, 1, v1           ; unit_local
    v_and_b32 v7, 1, v1               ; ks_local
    v_and_b32 v4, 15, v2              ; f16
    v_lshrrev_b32 v5, 4, v2           ; kg
    v_lshl_add_u32 v3, v6, 4, v4      ; f_local
    v_lshlrev_b32 v3, 7, v3
    v_lshl_add_u32 v3, v7, 6, v3
    v_lshl_add_u32 v3, v5, 4, v3
    ds_read_b128 v[8:11], v3
    s_lshr_b32 s28, s25, 4
    v_add_u32 v6, s28, v6
    v_lshlrev_b32 v6, 1, v6
    v_add_u32 v6, s7, v6
    v_lshlrev_b32 v6, 4, v6
    v_add_u32 v6, v6, v7
    s_lshr_b32 s29, s24, 5
    v_add_u32 v6, s29, v6
    v_lshlrev_b32 v6, 10, v6
    v_lshl_add_u32 v4, v2, 4, v6
    s_waitcnt lgkmcnt(0)
    buffer_store_dwordx4 v[8:11], v4, s[20:23], 0 offen
    """)
    wg_end(a, 0, "P2")
    a("s_endpgm")
    a.label("PREP_TRD")
    if ONLY and 'td' not in ONLY: a("s_branch PREP_END")
    a(f"s_load_dwordx2 s[42:43], s[0:1], {ARG['wd']}")
    a(f"""
    s_sub_u32 s3, s2, {base + 2*N_TG}
    s_lshr_b32 s4, s3, 3              ; ftile 0..42
    s_and_b32 s5, s3, 7               ; dtile 0..7
    s_waitcnt lgkmcnt(0)
    """)
    srd(a, 8, 42, D * F * 2)
    srd(a, 20, 40, D * F * 2, WDT_OFF)
    a(f"""
    v_lshrrev_b32 v1, 3, v0           ; frow 0..31
    v_and_b32 v2, 7, v0               ; dchunk
    s_lshl_b32 s24, s4, 5             ; f0
    s_lshl_b32 s25, s5, 6             ; d0
    v_add_u32 v3, s24, v1
    v_lshlrev_b32 v3, 10, v3
    v_lshl_add_u32 v3, v2, 4, v3
    s_lshl_b32 s27, s25, 1
    v_add_u32 v3, s27, v3
    buffer_load_dwordx4 v[8:11], v3, s[8:11], 0 offen
    v_lshlrev_b32 v5, 9, v2
    v_lshl_add_u32 v5, v1, 1, v5
    s_waitcnt vmcnt(0)
    """)
    for m in range(4):
        a(f"ds_write_b16 v5, v{8+m} offset:{(2*m)*64}")
        a(f"ds_write_b16_d16_hi v5, v{8+m} offset:{(2*m+1)*64}")
    a(f"""
    s_waitcnt lgkmcnt(0)
    s_barrier
    v_lshrrev_b32 v1, 6, v0           ; db_local
    v_and_b32 v2, 63, v0              ; lane'
    v_and_b32 v4, 15, v2              ; d16
    v_lshrrev_b32 v5, 4, v2           ; kg
    v_lshl_add_u32 v3, v1, 4, v4      ; d_local
    v_lshlrev_b32 v3, 6, v3
    v_lshl_add_u32 v3, v5, 4, v3
    ds_read_b128 v[8:11], v3
    s_lshr_b32 s28, s25, 4
    v_add_u32 v6, s28, v1
    v_mul_u32_u24 v6, 43, v6
    v_add_u32 v6, s4, v6
    v_lshlrev_b32 v6, 10, v6
    v_lshl_add_u32 v4, v2, 4, v6
    s_waitcnt lgkmcnt(0)
    buffer_store_dwordx4 v[8:11], v4, s[20:23], 0 offen
    """)
    wg_end(a, 0, "P3")
    a("s_endpgm")
    a.label("PREP_END")
    a("s_endpgm")
    return a.text(), 72


G1_D = 3
G1_STAGE = 20 * 1024
G1_WGS = 240
G1_LDS = G1_D * G1_STAGE


def gen_gemm1():
    a = Asm()
    a(f"""
    s_cmp_ge_u32 s2, {G1_WGS}
    s_cbranch_scc1 MID_CONV
    s_load_dwordx2 s[40:41], s[0:1], {ARG['ws']}
    s_and_b32 s3, s2, 15              ; mi
    s_lshr_b32 s4, s2, 4              ; fi
    s_mul_i32 s4, s4, 6
    s_min_u32 s4, s4, 80              ; u0
    v_lshrrev_b32 v1, 6, v0
    s_nop 0
    v_readfirstlane_b32 s5, v1        ; wave
    v_and_b32 v2, 63, v0              ; lane
    v_and_b32 v3, 15, v2
    v_lshrrev_b32 v4, 4, v2
    v_lshlrev_b32 v5, 4, v2
    s_waitcnt lgkmcnt(0)
    """)
    srd(a, 8, 40, WS_USED)
    srd(a, 12, 40, S * F * 2, H_OFF)
    stamp(a)
    a("s_mul_i32 s6, s5, 5")
    for j in range(5):
        a(f"""
        s_add_u32 s7, s6, {j}             ; f
        s_lshl_b32 s30, s3, 3
        s_add_u32 s30, s30, s7
        s_lshl_b32 s30, s30, 14
        s_sub_u32 s31, s7, 8
        s_lshl_b32 s32, s4, 1
        s_add_u32 s31, s31, s32
        s_lshl_b32 s31, s31, 14           ; (u0*2 + f-8)*16*1024
        s_add_u32 s31, s31, 0x{W1T_OFF:x}
        s_cmp_lt_u32 s7, 8
        s_cselect_b32 s{20+j}, s30, s31
        s_lshl_b32 s{25+j}, s7, 10
        """)
    a("""
    s_and_b32 s33, s5, 1              ; wm
    s_lshr_b32 s34, s5, 1             ; wf
    v_lshlrev_b32 v6, 4, v2           ; lane*16
    s_lshl_b32 s35, s33, 12           ; 4*wm*1024
    v_add_u32 v7, s35, v6
    s_mul_i32 s35, s34, 6144
    s_add_u32 s35, s35, 8192
    v_add_u32 v8, s35, v6
    """)
    VX0, VW0 = 10, 16
    for st in range(G1_D):
        a(f"v_add_u32 v{VX0+st}, {st*G1_STAGE}, v7")
        a(f"v_add_u32 v{VW0+st}, {st*G1_STAGE}, v8")
    ACC = 32
    FR = ACC + 96
    for i in range(96):
        a(f"v_mov_b32 v{ACC+i}, 0")

    def issue_stage(st):
        buf = st % G1_D
        for j in range(5):
            a(f"s_add_u32 m0, s{25+j}, {buf*G1_STAGE}")
            a("s_nop 0")
            a(f"buffer_load_dwordx4 v5, s[8:11], s{20+j} offen lds")
        a("v_add_u32 v5, 0x400, v5")

    def frag_reads(st, setb):
        buf = st % G1_D
        out = []
        for i in range(4):
            out.append(f"ds_read_b128 v[{setb+4*i}:{setb+4*i+3}], v{VX0+buf} offset:{i*1024}")
        for j in range(6):
            out.append(f"ds_read_b128 v[{setb+16+4*j}:{setb+16+4*j+3}], v{VW0+buf} offset:{j*1024}")
        return out

    NK = 16
    for st in range(G1_D):
        issue_stage(st)
    a(f"s_waitcnt vmcnt({5*(G1_D-1)})")
    a("s_barrier")
    for r in frag_reads(0, FR):
        a(r)
    a("s_waitcnt lgkmcnt(0)")
    for it in range(NK):
        if it in (0, 1, 8): stamp(a)
        cur = FR + 40 * (it % 2)
        nxt = FR + 40 * ((it + 1) % 2)
        if it + 1 < NK:
            issued = min(NK, G1_D + it)
            a(f"s_waitcnt vmcnt({5*(issued-(it+2))})")
            a("s_barrier")
            if it + G1_D < NK:
                issue_stage(it + G1_D)
            reads = frag_reads(it + 1, nxt)
        else:
            reads = []
        idx = 0
        for j in range(6):
            for i in range(4):
                if idx < len(reads):
                    a(reads[idx])
                idx += 1
                ac = ACC + (j * 4 + i) * 4
                a(f"v_mfma_f32_16x16x32_bf16 v[{ac}:{ac+3}], v[{cur+16+4*j}:{cur+16+4*j+3}], "
                  f"v[{cur+4*i}:{cur+4*i+3}], v[{ac}:{ac+3}]")
        a("s_waitcnt lgkmcnt(0)")
    a("s_nop 15")
    stamp(a)
    a(f"""
    v_lshrrev_b32 v6, 1, v4           ; fg/2
    v_lshlrev_b32 v6, 8, v6           ; *16*16
    v_lshl_add_u32 v6, v3, 4, v6      ; + s16*16
    v_and_b32 v7, 1, v4
    v_lshl_add_u32 v6, v7, 3, v6      ; + (fg%2)*8
    s_lshl_b32 s31, s3, 3
    s_lshl_b32 s32, s33, 2
    s_add_u32 s31, s31, s32
    s_mul_i32 s31, s31, {43*1024}
    s_mul_i32 s32, s34, 3
    s_add_u32 s32, s32, s4            ; U0 = u0 + 3wf
    """)
    T = 20
    a("s_mov_b32 s40, 0xbfb8aa3b")
    a("s_mov_b32 s41, 0xbfb8aa3b")
    for j in range(3):
        for i in range(4):
            g = ACC + ((2 * j) * 4 + i) * 4
            u = ACC + ((2 * j + 1) * 4 + i) * 4
            a(f"v_pk_mul_f32 v[{T}:{T+1}], v[{g}:{g+1}], s[40:41]")
            a(f"v_pk_mul_f32 v[{T+2}:{T+3}], v[{g+2}:{g+3}], s[40:41]")
            for q in range(4):
                a(f"v_exp_f32 v{T+q}, v{T+q}")
            a(f"v_pk_mul_f32 v[{g}:{g+1}], v[{g}:{g+1}], v[{u}:{u+1}]")
            a(f"v_pk_mul_f32 v[{g+2}:{g+3}], v[{g+2}:{g+3}], v[{u+2}:{u+3}]")
            a(f"v_pk_add_f32 v[{T}:{T+1}], v[{T}:{T+1}], 1.0 op_sel_hi:[1,0]")
            a(f"v_pk_add_f32 v[{T+2}:{T+3}], v[{T+2}:{T+3}], 1.0 op_sel_hi:[1,0]")
            for q in range(4):
                a(f"v_rcp_f32 v{T+q}, v{T+q}")
            a(f"s_add_u32 s36, s32, {j}")
            a("s_lshr_b32 s35, s36, 1")
            a("s_lshl_b32 s35, s35, 10")
            a("s_and_b32 s36, s36, 1")
            a("s_lshl_b32 s36, s36, 9")
            a("s_add_u32 s35, s35, s36")
            a("s_add_u32 s35, s35, s31")
            a(f"s_add_u32 s35, s35, {i*43*1024}")
            a(f"v_pk_mul_f32 v[{g}:{g+1}], v[{g}:{g+1}], v[{T}:{T+1}]")
            a(f"v_pk_mul_f32 v[{g+2}:{g+3}], v[{g+2}:{g+3}], v[{T+2}:{T+3}]")
            a(f"v_cvt_pk_bf16_f32 v{g}, v{g}, v{g+1}")
            a(f"v_cvt_pk_bf16_f32 v{g+1}, v{g+2}, v{g+3}")
            a(f"buffer_store_dwordx2 v[{g}:{g+1}], v6, s[12:15], s35 offen")
    stamp(a)
    stamp_flush(a, "G1"); wg_end(a, 1, "G1")
    a.label("G1_END")
    a("s_endpgm")
    return a.text(), FR + 80


CV_HP = 4160
CV_XL = 8 * CV_HP
CV_LDS = CV_XL + 96 * 80


def gen_conv():
    a = Asm()
    a.label("MID_CONV")
    a(f"""
    s_sub_u32 s2, s2, {G1_WGS}
    s_cmp_ge_u32 s2, {D}
    s_cbranch_scc1 CV_END
    s_load_dwordx2 s[40:41], s[0:1], {ARG['ws']}
    s_load_dwordx2 s[42:43], s[0:1], {ARG['ssm_k']}
    s_load_dwordx2 s[44:45], s[0:1], {ARG['ssm_D']}
    s_lshl_b32 s3, s2, 12             ; d*4096
    v_lshrrev_b32 v1, 6, v0
    s_nop 0
    v_readfirstlane_b32 s5, v1        ; wave
    s_waitcnt lgkmcnt(0)
    """)
    srd_s(a, 8, 42, 4096, 3)
    a(f"s_add_u32 s6, s3, 0x{KVT_OFF:x}")
    srd_s(a, 12, 40, 4096, 6)
    a(f"s_add_u32 s6, s3, 0x{Y2T_OFF:x}")
    srd_s(a, 16, 40, 4096, 6)
    srd(a, 20, 44, D * 2)
    stamp(a)
    a("""
    v_lshlrev_b32 v2, 4, v0           ; 16*t
    v_add_u32 v3, 0xffffffc0, v2      ; 16*(t-4)
    buffer_load_dwordx4 v[8:11], v3, s[8:11], 0 offen
    buffer_load_dwordx4 v[12:15], v3, s[8:11], 0 offen offset:16
    buffer_load_dwordx4 v[16:19], v2, s[12:15], 0 offen
    v_add_u32 v4, 0xfc0, v2
    buffer_load_dwordx4 v[32:35], v4, s[8:11], 0 offen
    buffer_load_dwordx4 v[36:39], v4, s[8:11], 0 offen offset:16
    s_lshl_b32 s7, s2, 1
    v_mov_b32 v5, s7
    buffer_load_ushort v60, v5, s[20:23], 0 offen
    """)
    a(f"""
    v_lshrrev_b32 v5, 2, v0
    v_mul_u32_u24 v5, 80, v5
    v_and_b32 v6, 3, v0
    v_lshl_add_u32 v5, v6, 4, v5      ; (t/4)*80 + (t%4)*16
    v_mov_b32 v28, 0
    v_mov_b32 v29, 0
    v_mov_b32 v30, 0
    v_mov_b32 v31, 0
    v_cmp_gt_u32 vcc, 128, v0
    s_and_saveexec_b64 s[30:31], vcc
    ds_write_b128 v5, v[28:31] offset:{CV_XL}
    s_mov_b64 exec, s[30:31]
    s_waitcnt vmcnt(4)
    """)

    def build(wbase, addr, off0):
        for m in range(7):
            a(f"v_alignbit_b32 v{20+m}, v{wbase+m+1}, v{wbase+m}, 16")
        for rho in range(8):
            sig = rho + 1
            if sig % 2:
                m = (sig - 1) // 2
                src = 20 + m
            else:
                src = wbase + sig // 2
            if src % 2:
                for q in range(4):
                    a(f"v_mov_b32 v{40+q}, v{src+q}")
                src = 40
            a(f"ds_write_b128 v{addr}, v[{src}:{src+3}] offset:{rho*CV_HP+off0}")

    build(8, 2, 0)
    a("s_waitcnt vmcnt(3)")
    a(f"ds_write_b128 v5, v[16:19] offset:{CV_XL+32*80}")
    a("s_waitcnt vmcnt(1)")
    a("v_cmp_gt_u32 vcc, 4, v0")
    a("s_and_saveexec_b64 s[30:31], vcc")
    build(32, 2, 4096)
    a("s_mov_b64 exec, s[30:31]")
    a(f"""
    v_and_b32 v1, 63, v0              ; lane
    v_and_b32 v2, 31, v1              ; b / n
    v_lshrrev_b32 v3, 5, v1
    v_and_b32 v4, 7, v2               ; rho
    v_mul_u32_u24 v4, {CV_HP}, v4
    v_lshrrev_b32 v5, 3, v2
    v_lshl_add_u32 v4, v5, 4, v4
    v_lshlrev_b32 v5, 4, v3
    v_sub_u32 v4, v4, v5              ; -16kg
    s_lshl_b32 s6, s5, 6
    s_add_u32 s6, s6, 16              ; 64w + 48 - 32
    v_add_u32 v4, s6, v4              ; vA
    v_mul_u32_u24 v6, 80, v2
    v_add_u32 v6, v6, v5              ; n*80 + kg*16
    s_mul_i32 s6, s5, 80
    s_sub_u32 s6, {CV_XL + (32-60)*80}, s6
    v_add_u32 v6, s6, v6              ; vB
    s_waitcnt lgkmcnt(0)
    s_barrier
    """)
    stamp(a)
    ACC0, ACC1 = 64, 80
    for i in range(32):
        a(f"v_mov_b32 v{ACC0+i}, 0")
    steps = [(i, ks) for i in range(16) for ks in range(2)]
    FRB = 96
    def reads(n):
        i, ks = steps[n]
        fb = FRB + 12 * (n % 3)
        r = [f"ds_read_b128 v[{fb}:{fb+3}], v4 offset:{256*i + 32*(1-ks)}"]
        r.append(f"ds_read_b128 v[{fb+4}:{fb+7}], v6 offset:{(15-i)*320 + ks*32 + 2560}")
        if i < 8:
            r.append(f"ds_read_b128 v[{fb+8}:{fb+11}], v6 offset:{(15-i)*320 + ks*32}")
        return r
    for r in reads(0): a(r)
    for r in reads(1): a(r)
    for n in range(len(steps)):
        if n + 2 < len(steps):
            nx = reads(n + 2)
            for r in nx: a(r)
            a(f"s_waitcnt lgkmcnt({len(nx) + len(reads(n+1))})")
        elif n + 1 < len(steps):
            a(f"s_waitcnt lgkmcnt({len(reads(n+1))})")
        else:
            a("s_waitcnt lgkmcnt(0)")
        i, ks = steps[n]
        fb = FRB + 12 * (n % 3)
        a(f"v_mfma_f32_32x32x16_bf16 v[{ACC1}:{ACC1+15}], v[{fb}:{fb+3}], v[{fb+4}:{fb+7}], v[{ACC1}:{ACC1+15}]")
        if i < 8:
            a(f"v_mfma_f32_32x32x16_bf16 v[{ACC0}:{ACC0+15}], v[{fb}:{fb+3}], v[{fb+8}:{fb+11}], v[{ACC0}:{ACC0+15}]")
    a("s_nop 15")
    a("s_nop 3")
    stamp(a)
    a("s_barrier")
    a("""
    v_lshlrev_b32 v7, 4, v1
    s_lshl_b32 s6, s5, 13
    v_add_u32 v8, s6, v7
    """)
    for q in range(8):
        a(f"ds_write_b128 v8, v[{ACC0+4*q}:{ACC0+4*q+3}] offset:{q*1024}")
    a("s_waitcnt lgkmcnt(0)")
    a("s_barrier")
    a("""
    s_lshl_b32 s6, s5, 11             ; q0*1024 = 2w*1024
    v_add_u32 v8, s6, v7
    """)
    for qq in range(2):
        for p in range(4):
            a(f"ds_read_b128 v[{96+16*qq+4*p}:{96+16*qq+4*p+3}], v8 offset:{p*8192+qq*1024}")
    a(f"""
    s_lshr_b32 s6, s5, 1
    s_mul_i32 s6, s6, 2560
    s_and_b32 s7, s5, 1
    s_lshl_b32 s7, s7, 5
    s_add_u32 s6, s6, s7
    s_add_u32 s6, s6, {CV_XL + 32*80 + 8}
    v_mul_u32_u24 v9, 80, v2
    v_lshlrev_b32 v10, 3, v3
    v_sub_u32 v9, v9, v10
    v_add_u32 v9, s6, v9
    ds_read_b64 v[56:57], v9
    ds_read_b64 v[58:59], v9 offset:16
    s_waitcnt lgkmcnt(0)
    s_waitcnt vmcnt(0)
    v_lshlrev_b32 v60, 16, v60
    """)
    a("""
    s_lshr_b32 s6, s5, 1
    s_lshl_b32 s6, s6, 11
    s_and_b32 s7, s5, 1
    s_lshl_b32 s7, s7, 5
    s_add_u32 s6, s6, s7
    v_lshlrev_b32 v11, 6, v2
    v_lshl_add_u32 v11, v3, 3, v11
    v_add_u32 v11, s6, v11
    """)
    for qq in range(2):
        y = 96 + 16 * qq
        for r in range(4):
            a(f"v_add_f32 v{y+r}, v{y+r}, v{y+4+r}")
            a(f"v_add_f32 v{y+8+r}, v{y+8+r}, v{y+12+r}")
            a(f"v_add_f32 v{y+r}, v{y+r}, v{y+8+r}")
        round2(a, y, y + 1, 44)
        round2(a, y + 2, y + 3, 44)
        dA, dB = 56 + 2 * qq, 57 + 2 * qq
        unpack2(a, 48, 49, dA)
        unpack2(a, 50, 51, dB)
        for t in (48, 49, 50, 51):
            a(f"v_mul_f32 v{t}, v{t}, v60")
        round2(a, 48, 49, 44)
        round2(a, 50, 51, 44)
        a(f"v_add_f32 v{y}, v{y}, v51")
        a(f"v_add_f32 v{y+1}, v{y+1}, v50")
        a(f"v_add_f32 v{y+2}, v{y+2}, v49")
        a(f"v_add_f32 v{y+3}, v{y+3}, v48")
        a(f"v_cvt_pk_bf16_f32 v{52}, v{y}, v{y+1}")
        a(f"v_cvt_pk_bf16_f32 v{53}, v{y+2}, v{y+3}")
        a(f"buffer_store_dwordx2 v[52:53], v11, s[16:19], 0 offen offset:{16*qq}")
        a("s_nop 0")
    stamp(a)
    stamp_flush(a, "CV"); wg_end(a, 1, "CV")
    a.label("CV_END")
    a("s_endpgm")
    return a.text(), 132


G2_PP = 272
G2_PW = 64 * G2_PP
G2_YL = 0
G2_YP = 144
G2_P0 = 64 * G2_YP
G2_LDS = G2_P0 + 4 * G2_PW


def gen_gemm2():
    a = Asm()
    a(f"""
    s_cmp_ge_u32 s2, 256
    s_cbranch_scc1 G2_END
    s_load_dwordx2 s[40:41], s[0:1], {ARG['ws']}
    s_load_dwordx2 s[42:43], s[0:1], {ARG['q']}
    s_load_dwordx2 s[44:45], s[0:1], {ARG['out']}
    s_and_b32 s3, s2, 31              ; si
    s_lshr_b32 s4, s2, 5              ; di
    v_lshrrev_b32 v1, 6, v0
    s_nop 0
    v_readfirstlane_b32 s5, v1        ; wave
    v_and_b32 v2, 63, v0
    v_and_b32 v3, 15, v2
    v_lshrrev_b32 v4, 4, v2
    s_waitcnt lgkmcnt(0)
    """)
    srd(a, 8, 40, S * F * 2, H_OFF)
    srd(a, 12, 40, D * F * 2, WDT_OFF)
    srd(a, 16, 40, S * D * 2, Y2T_OFF)
    srd(a, 20, 40, S * D * 2, XN_OFF)
    srd(a, 24, 42, S * D * 2)
    srd(a, 28, 44, S * D * 2)
    stamp(a)
    a(f"""
    s_movk_i32 s34, {F*2}
    s_lshl_b32 s35, s3, 6             ; s0
    s_lshl_b32 s36, s4, 6             ; d0
    v_lshlrev_b32 v7, 4, v2           ; lane*16
    s_mul_i32 s38, s3, {4*43*1024}
    v_add_u32 v5, s38, v7
    s_mul_i32 s38, s4, {4*43*1024}
    v_add_u32 v6, s38, v7
    s_mul_i32 s37, s5, {11*1024}
    """)
    for i in range(1, 4):
        a(f"v_add_u32 v{8+i}, {i*43*1024}, v5")
        a(f"v_add_u32 v{12+i}, {i*43*1024}, v6")
    a("v_mov_b32 v8, v5")
    a("v_mov_b32 v12, v6")
    a(f"""
    v_lshrrev_b32 v16, 2, v0
    v_and_b32 v17, 3, v0
    v_add_u32 v18, s36, v16
    v_lshlrev_b32 v18, 12, v18
    v_lshl_add_u32 v18, v17, 5, v18
    s_lshl_b32 s38, s35, 1
    v_add_u32 v18, s38, v18
    buffer_load_dwordx4 v[20:23], v18, s[16:19], 0 offen
    buffer_load_dwordx4 v[24:27], v18, s[16:19], 0 offen offset:16
    v_mul_u32_u24 v19, {G2_YP}, v16
    v_lshl_add_u32 v19, v17, 5, v19
    """)
    a("""
    v_lshrrev_b32 v28, 3, v0
    v_and_b32 v29, 7, v0
    v_add_u32 v30, s35, v28
    v_lshlrev_b32 v30, 10, v30
    v_lshl_add_u32 v30, v29, 4, v30
    s_lshl_b32 s38, s36, 1
    v_add_u32 v30, s38, v30                ; x offset
    v_add_u32 v31, s35, v28
    v_lshrrev_b32 v7, 4, v31
    v_lshlrev_b32 v7, 14, v7
    v_and_b32 v31, 15, v31
    v_lshl_add_u32 v7, v31, 4, v7
    v_lshrrev_b32 v31, 2, v29
    s_lshr_b32 s38, s36, 5
    v_add_u32 v31, s38, v31
    v_lshl_add_u32 v7, v31, 10, v7
    v_and_b32 v31, 3, v29
    v_lshl_add_u32 v7, v31, 8, v7
    buffer_load_dwordx4 v[224:227], v30, s[24:27], 0 offen
    buffer_load_dwordx4 v[228:231], v7, s[20:23], 0 offen
    v_add_u32 v30, 0x8000, v30
    v_add_u32 v7, 0x8000, v7
    buffer_load_dwordx4 v[232:235], v30, s[24:27], 0 offen
    buffer_load_dwordx4 v[236:239], v7, s[20:23], 0 offen
    """)
    ACC = 32
    FR = 96
    NS = 4
    for i in range(64):
        a(f"v_mov_b32 v{ACC+i}, 0")
    def loads(step):
        fb = FR + 32 * (step % NS)
        for i in range(4):
            a(f"buffer_load_dwordx4 v[{fb+4*i}:{fb+4*i+3}], v{8+i}, s[8:11], s37 offen offset:{(step%4)*1024}")
            a(f"buffer_load_dwordx4 v[{fb+16+4*i}:{fb+16+4*i+3}], v{12+i}, s[12:15], s37 offen offset:{(step%4)*1024}")
        if step % 4 == 3:
            a("s_add_u32 s37, s37, 4096")
    for st in range(NS - 1):
        loads(st)
    NST = 11
    for st in range(NST):
        if st in (1, 6): stamp(a)
        if st + NS - 1 < NST:
            loads(st + NS - 1)
            a(f"s_waitcnt vmcnt({8*(NS-1)})")
        else:
            a(f"s_waitcnt vmcnt({8*(NST-1-st)})")
        if st == NST - 1:
            a("s_cmp_eq_u32 s5, 3")
            a("s_cbranch_scc1 G2_SKIP")
        fb = FR + 32 * (st % NS)
        for db in range(4):
            for sb in range(4):
                ac = ACC + (db * 4 + sb) * 4
                a(f"v_mfma_f32_16x16x32_bf16 v[{ac}:{ac+3}], v[{fb+16+4*db}:{fb+16+4*db+3}], "
                  f"v[{fb+4*sb}:{fb+4*sb+3}], v[{ac}:{ac+3}]")
    a.label("G2_SKIP")
    a("s_nop 15")
    stamp(a)
    a(f"ds_write_b128 v19, v[20:23] offset:{G2_YL}")
    a(f"ds_write_b128 v19, v[24:27] offset:{G2_YL+16}")
    a(f"""
    v_mul_u32_u24 v5, {G2_PP}, v3
    v_lshl_add_u32 v5, v4, 4, v5
    s_mul_i32 s38, s5, {G2_PW}
    s_add_u32 s38, s38, {G2_P0}
    v_add_u32 v5, s38, v5
    """)
    for db in range(4):
        for sb in range(4):
            ac = ACC + (db * 4 + sb) * 4
            a(f"ds_write_b128 v5, v[{ac}:{ac+3}] offset:{sb*16*G2_PP + db*64}")
    a("s_waitcnt lgkmcnt(0)")
    stamp(a)
    a("s_barrier")
    stamp(a)
    a(f"""
    v_lshrrev_b32 v1, 3, v0
    v_and_b32 v2, 7, v0
    v_mul_u32_u24 v3, {G2_PP}, v1
    v_lshl_add_u32 v3, v2, 5, v3
    v_add_u32 v3, {G2_P0}, v3
    v_add_u32 v7, {2*G2_PW}, v3
    v_mul_u32_u24 v4, {8*G2_YP}, v2
    v_lshl_add_u32 v4, v1, 1, v4          ; y2 addr
    v_add_u32 v5, s35, v1
    v_lshlrev_b32 v5, 10, v5
    v_lshl_add_u32 v5, v2, 4, v5
    s_lshl_b32 s38, s36, 1
    v_add_u32 v5, s38, v5
    """)
    for p in range(2):
        a(f"v_add_u32 v6, {p*32*1024}, v5")
        for w in range(4):
            ar = 3 if w < 2 else 7
            a(f"ds_read_b128 v[{32+8*w}:{35+8*w}], v{ar} offset:{(w%2)*G2_PW + p*32*G2_PP}")
            a(f"ds_read_b128 v[{36+8*w}:{39+8*w}], v{ar} offset:{(w%2)*G2_PW + p*32*G2_PP + 16}")
        for i in range(8):
            a(f"ds_read_u16 v{64+i}, v4 offset:{G2_YL + i*G2_YP + p*64}")
        a("s_waitcnt lgkmcnt(0)")
        for i in range(8):
            a(f"v_add_f32 v{32+i}, v{32+i}, v{40+i}")
            a(f"v_add_f32 v{48+i}, v{48+i}, v{56+i}")
            a(f"v_add_f32 v{32+i}, v{32+i}, v{48+i}")
            a(f"v_lshlrev_b32 v{64+i}, 16, v{64+i}")
        for m in range(4):
            unpack2(a, 72 + 2 * m, 73 + 2 * m, 224 + 8 * p + m)
            unpack2(a, 80 + 2 * m, 81 + 2 * m, 228 + 8 * p + m)
        for m in range(4):
            e0, e1 = 2 * m, 2 * m + 1
            a(f"v_mul_f32 v{80+e0}, v{80+e0}, v{64+e0}")
            a(f"v_mul_f32 v{80+e1}, v{80+e1}, v{64+e1}")
            round2(a, 80 + e0, 80 + e1, 88)
            a(f"v_add_f32 v{72+e0}, v{72+e0}, v{80+e0}")
            a(f"v_add_f32 v{72+e1}, v{72+e1}, v{80+e1}")
            round2(a, 72 + e0, 72 + e1, 88)
            round2(a, 32 + e0, 32 + e1, 88)
            a(f"v_add_f32 v{72+e0}, v{72+e0}, v{32+e0}")
            a(f"v_add_f32 v{72+e1}, v{72+e1}, v{32+e1}")
            a(f"v_cvt_pk_bf16_f32 v{8+m}, v{72+e0}, v{72+e1}")
        G2ST = "sc0 sc1"
        if G2ST != "none":
            a("buffer_store_dwordx4 v[8:11], v6, s[28:31], 0 offen " + G2ST)
        a("s_nop 1")
    stamp(a)
    stamp_flush(a, "G2"); wg_end(a, 2, "G2")
    a.label("G2_END")
    a("s_endpgm")
    return a.text(), 240


def main():
    hdr = open(os.path.join(os.path.dirname(__file__), "header.txt")).read()
    g1, v1 = gen_gemm1()
    cv, v2 = gen_conv()
    kernels = [("prep_kernel", gen_prep(), (PREP_WGS, 256, 8192)),
               ("mid_kernel", (g1 + cv, max(v1, v2)), (G1_WGS + D, 256, max(G1_LDS, CV_LDS))),
               ("gemm2_kernel", gen_gemm2(), (256, 256, G2_LDS))]
    out = hdr
    for n, _, (g, b, l) in kernels:
        out += f"; @launch kernel={n} grid=({g},1,1) block=({b},1,1) lds={l}\n"
    out += '.amdgcn_target "amdgcn-amd-amdhsa--gfx950"\n.text\n'
    for n, (body, _), _ in kernels:
        out += kernel_header(n) + body
    out += '.section .rodata,"a"\n'
    for n, (_, vg), _ in kernels:
        out += kernel_desc(n, 256 if (STAMPS or WGST) else vg)
    dst = sys.argv[1] if len(sys.argv) > 1 else f"cdna_kernels/{NAME}.s"
    open(dst, "w").write(out)
    print("wrote", dst, len(out))


if __name__ == "__main__":
    main()
```

```python
import sys, os

NAME = "parallel_sum__ssm_conv_h3__swiglu_ffn__prompt"

S, D, F = 2048, 512, 1376
ARG = dict(q=0, k=8, v=16, shift_k=24, ssm_k=32, ssm_D=40, bx=48, wg=56, wu=64, wd=72,
           out=80, dbg=88, ws=96)
XN_OFF  = 0x000000
KVT_OFF = 0x200000
W1T_OFF = 0x400000
WDT_OFF = 0x700000
H_OFF   = 0x900000
Y2T_OFF = 0xF00000
WS_USED = 0x1100000
SRD3 = 0x00020000


STFLAGS = os.environ.get("STFLAGS", "")


class Asm:
    def __init__(self):
        self.L = []
    def __call__(self, fmt, *a):
        for line in fmt.strip().split("\n"):
            line = line.strip()
            if line:
                if line.startswith("buffer_store") and "sc1" not in line and STFLAGS:
                    line = line.split(";")[0].rstrip() + " " + STFLAGS
                self.L.append("  " + line)
    def label(self, l):
        self.L.append(l + ":")
    def text(self):
        return "\n".join(self.L) + "\n"


def srd(a, dst, ptr, nbytes, off=0):
    if off:
        a(f"s_add_u32 s{dst}, s{ptr}, 0x{off:x}")
        a(f"s_addc_u32 s{dst+1}, s{ptr+1}, 0")
    else:
        a(f"s_mov_b32 s{dst}, s{ptr}")
        a(f"s_mov_b32 s{dst+1}, s{ptr+1}")
    a(f"s_and_b32 s{dst+1}, s{dst+1}, 0xffff")
    a(f"s_mov_b32 s{dst+2}, 0x{nbytes:x}")
    a(f"s_mov_b32 s{dst+3}, 0x{SRD3:x}")


def srd_s(a, dst, ptr, nbytes, soff):
    a(f"s_add_u32 s{dst}, s{ptr}, s{soff}")
    a(f"s_addc_u32 s{dst+1}, s{ptr+1}, 0")
    a(f"s_and_b32 s{dst+1}, s{dst+1}, 0xffff")
    a(f"s_mov_b32 s{dst+2}, 0x{nbytes:x}")
    a(f"s_mov_b32 s{dst+3}, 0x{SRD3:x}")


def unpack2(a, lo, hi, src):
    a(f"v_lshlrev_b32 v{lo}, 16, v{src}")
    a(f"v_and_b32 v{hi}, 0xffff0000, v{src}")


def round2(a, x, y, t):
    a(f"v_cvt_pk_bf16_f32 v{t}, v{x}, v{y}")
    a(f"v_lshlrev_b32 v{x}, 16, v{t}")
    a(f"v_and_b32 v{y}, 0xffff0000, v{t}")


def round1(a, x, t):
    a(f"v_cvt_pk_bf16_f32 v{t}, v{x}, v{x}")
    a(f"v_lshlrev_b32 v{x}, 16, v{t}")


STAMPS = os.environ.get("STAMPS", "0") == "1"
_stamp_n = [0]


def stamp(a, real=False):
    if not STAMPS:
        return
    i = _stamp_n[0]
    _stamp_n[0] += 1
    REAL = os.environ.get("REALT", "0") == "1"
    a(f"s_mem{'real' if REAL else ''}time s[{70+2*i}:{71+2*i}]")
    a("s_waitcnt lgkmcnt(0)")


def stamp_flush(a, tag, only=None, slot=0):
    if not STAMPS:
        return
    n = _stamp_n[0]
    _stamp_n[0] = 0
    a(f"""
    s_load_dwordx2 s[66:67], s[0:1], {ARG['dbg']}
    s_waitcnt lgkmcnt(0)
    """)
    srd(a, 60, 66, 256)
    a(f"""
    v_cmp_gt_u32 vcc, 64, v0
    s_and_saveexec_b64 s[64:65], vcc
    s_cbranch_execz STF_{tag}
    """)
    if only is None:
        a(f"""
        s_and_b32 s68, s2, 63
        s_cmp_lg_u32 s68, 0
        s_cbranch_scc1 STF_{tag}
        s_lshr_b32 s68, s2, 6
        s_mul_i32 s68, s68, 64
        """)
    else:
        a(f"""
        s_cmp_lg_u32 s2, {only}
        s_cbranch_scc1 STF_{tag}
        s_mov_b32 s68, {slot*64}
        """)
    for i in range(n):
        a(f"v_mov_b32 v250, s{70+2*i}")
        a(f"v_mov_b32 v251, {4*i}")
        a("buffer_store_dword v250, v251, s[60:63], s68 offen")
    a.label(f"STF_{tag}")
    a("s_mov_b64 exec, s[64:65]")


WGST = os.environ.get("WGST", "0") == "1"


def wg_begin(a):
    if WGST:
        a("s_memrealtime s[94:95]")


def wg_end(a, k, tag):
    if not WGST:
        return
    a(f"""
    s_waitcnt vmcnt(0) lgkmcnt(0)
    s_memrealtime s[92:93]
    s_load_dwordx2 s[66:67], s[0:1], {ARG['ws']}
    s_waitcnt lgkmcnt(0)
    """)
    srd(a, 60, 66, 0x1100000)
    a(f"""
    v_cmp_gt_u32 vcc, 1, v0
    s_and_saveexec_b64 s[64:65], vcc
    s_cbranch_execz WGE_{tag}
    v_mov_b32 v250, s94
    v_mov_b32 v251, s92
    s_lshl_b32 s68, s96, 3
    s_add_u32 s68, s68, {0x1000000 + k*0x4000}
    v_mov_b32 v252, 0
    buffer_store_dwordx2 v[250:251], v252, s[60:63], s68 offen
    """)
    a.label(f"WGE_{tag}")
    a("s_mov_b64 exec, s[64:65]")


def kernel_header(name):
    return (f".globl {name}\n.p2align 8\n.type {name},@function\n{name}:\n" + ("s_memrealtime s[94:95]\ns_mov_b32 s96, s2\n" if WGST else ""))


def kernel_desc(name, vgpr, sgpr=102):
    acc = (vgpr + 3) // 4 * 4
    return (f".p2align 6\n.amdhsa_kernel {name}\n"
            f"  .amdhsa_next_free_vgpr {vgpr}\n"
            f"  .amdhsa_next_free_sgpr {sgpr}\n"
            f"  .amdhsa_accum_offset {acc}\n"
            f"  .amdhsa_group_segment_fixed_size 0\n"
            f"  .amdhsa_kernarg_size 104\n"
            f"  .amdhsa_user_sgpr_count 2\n"
            f"  .amdhsa_user_sgpr_kernarg_segment_ptr 1\n"
            f"  .amdhsa_system_sgpr_workgroup_id_x 1\n"
            f".end_amdhsa_kernel\n")


N_LN, N_KV, N_TG, N_TD = 512, 256, 0, 0
N_PF = int(os.environ.get('NPF', '86'))
PREP_WGS = N_LN + N_KV + N_PF


def wave_allreduce(a, x, t, addr_regs):
    for r in addr_regs:
        a(f"ds_bpermute_b32 v{t}, v{r}, v{x}")
        a("s_waitcnt lgkmcnt(0)")
        a(f"v_add_f32 v{x}, v{x}, v{t}")


def wave_allreduce_dpp(a, x):
    for mode in ("quad_perm:[1,0,3,2]", "quad_perm:[2,3,0,1]", "row_half_mirror", "row_mirror"):
        a("s_nop 1")
        a(f"v_add_f32_dpp v{x}, v{x}, v{x} {mode} row_mask:0xf bank_mask:0xf")
    a("s_nop 0")
    for i in range(4):
        a(f"v_readlane_b32 s{60+i}, v{x}, {16*i}")
    a("s_nop 1")
    a(f"v_mov_b32 v{x}, s60")
    for i in range(1, 4):
        a(f"v_add_f32 v{x}, s{60+i}, v{x}")


def gen_prep():
    a = Asm()
    a(f"""
    s_cmp_ge_u32 s2, {PREP_WGS}
    s_cbranch_scc1 PREP_END
    s_load_dwordx2 s[40:41], s[0:1], {ARG['ws']}
    s_cmp_ge_u32 s2, {N_LN}
    s_cbranch_scc1 PREP_NOT_LN
    """)
    ONLY = os.environ.get("PREP_ONLY", "")
    if ONLY and 'ln' not in ONLY: a("s_branch PREP_END")
    a(f"s_load_dwordx2 s[42:43], s[0:1], {ARG['q']}")
    a("""
    v_lshrrev_b32 v1, 6, v0
    v_and_b32 v2, 63, v0
    s_lshl_b32 s3, s2, 2
    v_add_u32 v1, s3, v1
    v_lshlrev_b32 v1, 10, v1
    v_lshl_add_u32 v1, v2, 4, v1
    v_lshlrev_b32 v2, 2, v2
    """)
    ad = list(range(40, 46))
    for i, m in enumerate([1, 2, 4, 8, 16, 32]):
        a(f"v_xor_b32 v{ad[i]}, {m*4}, v2")
    a("s_waitcnt lgkmcnt(0)")
    srd(a, 8, 42, S * D * 2)
    srd(a, 12, 40, S * D * 2, XN_OFF)
    stamp(a)
    a("buffer_load_dwordx4 v[4:7], v1, s[8:11], 0 offen")
    a("s_waitcnt vmcnt(0)")
    stamp(a)
    for i in range(4):
        unpack2(a, 8 + 2 * i, 9 + 2 * i, 4 + i)
    a("""
    v_add_f32 v16, v8, v9
    v_add_f32 v17, v10, v11
    v_add_f32 v18, v12, v13
    v_add_f32 v19, v14, v15
    v_add_f32 v16, v16, v17
    v_add_f32 v18, v18, v19
    v_add_f32 v16, v16, v18
    """)
    wave_allreduce_dpp(a, 16)
    a("v_mul_f32 v16, 0x3b000000, v16")
    for i in range(8):
        a(f"v_sub_f32 v{20+i}, v{8+i}, v16")
    a("v_mul_f32 v17, v20, v20")
    for i in range(1, 8):
        a(f"v_fmac_f32 v17, v{20+i}, v{20+i}")
    wave_allreduce_dpp(a, 17)
    a("v_mul_f32 v17, 0x3b000000, v17")
    round2(a, 16, 17, 18)
    a("v_add_f32 v17, 0x3727c5ac, v17")
    round1(a, 17, 18)
    a("v_sqrt_f32 v17, v17")
    a("s_nop 0")
    round1(a, 17, 18)
    a("v_rcp_f32 v19, v17")
    for i in range(8):
        a(f"v_sub_f32 v{8+i}, v{8+i}, v16")
    for i in range(4):
        round2(a, 8 + 2 * i, 9 + 2 * i, 18)
    for i in range(8):
        x = 8 + i
        a(f"v_mul_f32 v28, v{x}, v19")
        a(f"v_fma_f32 v29, -v28, v17, v{x}")
        a(f"v_fma_f32 v{x}, v29, v19, v28")
    for i in range(4):
        a(f"v_cvt_pk_bf16_f32 v{4+i}, v{8+2*i}, v{9+2*i}")
    a("""
    v_lshrrev_b32 v30, 10, v1          ; row
    v_lshrrev_b32 v31, 4, v30
    v_lshlrev_b32 v31, 14, v31         ; (r/16)*16*1024
    v_and_b32 v30, 15, v30
    v_lshl_add_u32 v31, v30, 4, v31    ; + (r%16)*16
    v_and_b32 v30, 63, v0
    v_lshrrev_b32 v32, 2, v30
    v_lshl_add_u32 v31, v32, 10, v31   ; + (l/4)*1024
    v_and_b32 v30, 3, v30
    v_lshl_add_u32 v31, v30, 8, v31    ; + (l%4)*256
    """)
    a("buffer_store_dwordx4 v[4:7], v31, s[12:15], 0 offen")
    stamp(a); stamp_flush(a, "P0", 100, 0); wg_end(a, 0, "P0")
    a("s_endpgm")

    a.label("PREP_NOT_LN")
    a(f"s_cmp_ge_u32 s2, {N_LN + N_KV}")
    a("s_cbranch_scc1 PREP_TR")
    if ONLY and 'kv' not in ONLY: a("s_branch PREP_END")
    a(f"s_load_dwordx2 s[42:43], s[0:1], {ARG['k']}")
    a(f"s_load_dwordx2 s[44:45], s[0:1], {ARG['v']}")
    a(f"s_load_dwordx2 s[46:47], s[0:1], {ARG['shift_k']}")
    a(f"""
    s_sub_u32 s3, s2, {N_LN}
    s_lshr_b32 s4, s3, 3          ; stile
    s_and_b32 s5, s3, 7           ; dtile
    s_lshl_b32 s4, s4, 6          ; s0
    s_lshl_b32 s5, s5, 6          ; d0
    v_and_b32 v1, 7, v0           ; dch
    v_lshrrev_b32 v2, 3, v0       ; sr 0..31
    v_lshlrev_b32 v3, 3, v1
    v_add_u32 v3, s5, v3          ; d = d0 + 8*dch
    v_lshlrev_b32 v4, 3, v3
    v_add_u32 v5, s4, v2          ; s = s0 + sr
    v_lshlrev_b32 v5, 10, v5
    v_lshl_add_u32 v5, v3, 1, v5
    s_waitcnt lgkmcnt(0)
    """)
    srd(a, 8, 42, S * D * 2)
    srd(a, 12, 44, S * D * 2)
    srd(a, 16, 46, D * 4 * 2)
    srd(a, 20, 40, S * D * 2, KVT_OFF)
    stamp(a)
    for i in range(4):
        a(f"buffer_load_dwordx4 v[{16+4*i}:{19+4*i}], v4, s[16:19], 0 offen offset:{16*i}")
    for p in range(2):
        KB = 32 + 20 * p
        a(f"v_add_u32 v7, {p*32*1024}, v5")
        a(f"buffer_load_dwordx4 v[{KB}:{KB+3}], v7, s[8:11], 0 offen")
        a("v_add_u32 v8, 0xfffffc00, v7")
        a(f"buffer_load_dwordx4 v[{KB+4}:{KB+7}], v8, s[8:11], 0 offen")
        a("v_add_u32 v8, 0xfffff800, v7")
        a(f"buffer_load_dwordx4 v[{KB+8}:{KB+11}], v8, s[8:11], 0 offen")
        a("v_add_u32 v8, 0xfffff400, v7")
        a(f"buffer_load_dwordx4 v[{KB+12}:{KB+15}], v8, s[8:11], 0 offen")
        a(f"buffer_load_dwordx4 v[{KB+16}:{KB+19}], v7, s[12:15], 0 offen")
    a("""
    v_xor_b32 v6, 7, v2
    v_lshlrev_b32 v6, 1, v6
    v_lshl_add_u32 v6, v1, 10, v6
    """)
    a("s_waitcnt vmcnt(10)")
    for p in range(2):
        a(f"s_waitcnt vmcnt({5*(1-p)})")
        KB = 32 + 20 * p
        for m in range(4):
            acc0, acc1, t0, t1, tt = 9, 10, 11, 12, 13
            first = True
            for j in (3, 2, 1, 0):
                unpack2(a, t0, t1, KB + 4 * j + m)
                for (tt_, e) in ((t0, 0), (t1, 1)):
                    wd_ = 16 + 4 * m + 2 * e + j // 2
                    if j % 2 == 0:
                        a(f"v_lshlrev_b32 v{tt}, 16, v{wd_}")
                    else:
                        a(f"v_and_b32 v{tt}, 0xffff0000, v{wd_}")
                    a(f"v_mul_f32 v{tt_}, v{tt_}, v{tt}")
                if first:
                    round2(a, t0, t1, tt)
                    a(f"v_mov_b32 v{acc0}, v{t0}")
                    a(f"v_mov_b32 v{acc1}, v{t1}")
                    first = False
                else:
                    round2(a, t0, t1, tt)
                    a(f"v_add_f32 v{acc0}, v{acc0}, v{t0}")
                    a(f"v_add_f32 v{acc1}, v{acc1}, v{t1}")
                    round2(a, acc0, acc1, tt)
            unpack2(a, t0, t1, KB + 16 + m)
            a(f"v_mul_f32 v{acc0}, v{acc0}, v{t0}")
            a(f"v_mul_f32 v{acc1}, v{acc1}, v{t1}")
            a(f"v_cvt_pk_bf16_f32 v{tt}, v{acc0}, v{acc1}")
            a(f"ds_write_b16 v6, v{tt} offset:{p*64 + (2*m)*128}")
            a(f"ds_write_b16_d16_hi v6, v{tt} offset:{p*64 + (2*m+1)*128}")
    a("s_waitcnt lgkmcnt(0)")
    a("s_barrier")
    a("""
    v_lshrrev_b32 v1, 3, v0       ; d_local 0..31
    v_and_b32 v2, 7, v0           ; chunk
    v_lshlrev_b32 v3, 7, v1
    v_lshl_add_u32 v3, v2, 4, v3
    v_add_u32 v4, s5, v1
    v_lshlrev_b32 v4, 12, v4      ; (d0+d_local)*4096
    v_lshl_add_u32 v4, v2, 4, v4
    s_lshl_b32 s6, s4, 1
    v_add_u32 v4, s6, v4
    ds_read_b128 v[8:11], v3
    ds_read_b128 v[12:15], v3 offset:4096
    v_add_u32 v5, 0x20000, v4
    s_waitcnt lgkmcnt(1)
    buffer_store_dwordx4 v[8:11], v4, s[20:23], 0 offen
    s_waitcnt lgkmcnt(0)
    buffer_store_dwordx4 v[12:15], v5, s[20:23], 0 offen
    """)
    stamp(a); stamp_flush(a, "P1", 600, 1); wg_end(a, 0, "P1")
    a("s_endpgm")

    a.label("PREP_TR")
    base = N_LN + N_KV
    if N_PF:
        a(f"""
        s_load_dwordx2 s[42:43], s[0:1], {ARG['wg']}
        s_load_dwordx2 s[44:45], s[0:1], {ARG['wu']}
        s_load_dwordx2 s[46:47], s[0:1], {ARG['wd']}
        s_sub_u32 s3, s2, {base}
        s_lshl_b32 s3, s3, 12
        v_lshlrev_b32 v1, 4, v0
        v_add_u32 v1, s3, v1
        s_waitcnt lgkmcnt(0)
        """)
        srd(a, 8, 42, D * F * 2)
        srd(a, 12, 44, D * F * 2)
        srd(a, 16, 46, D * F * 2)
        npass = (D * F * 2 + N_PF * 4096 - 1) // (N_PF * 4096)
        for ps in range(npass):
            for t in range(3):
                a(f"buffer_load_dwordx4 v[{4+4*t}:{7+4*t}], v1, s[{8+4*t}:{11+4*t}], 0 offen")
            a(f"v_add_u32 v1, {N_PF*4096}, v1")
        a("s_waitcnt vmcnt(0)")
    a.label("PREP_END")
    a("s_endpgm")
    return a.text(), 72


G1_D = int(os.environ.get('G1D', '3'))
G1_STAGE = 20 * 1024
G1_WGS = 240
G1_LDS = G1_D * G1_STAGE


def gen_gemm1():
    a = Asm()
    if os.environ.get("CV_FIRST"):
        a(f"""
        s_cmp_lt_u32 s2, {D}
        s_cbranch_scc1 MID_CONV
        s_sub_u32 s2, s2, {D}
        s_cmp_ge_u32 s2, {G1_WGS}
        s_cbranch_scc1 G1_END
        """)
    else:
        a(f"""
        s_cmp_ge_u32 s2, {G1_WGS}
        s_cbranch_scc1 MID_CONV
        """)
    a(f"""
    {"s_setprio " + os.environ["PRIO_G1"] if os.environ.get("PRIO_G1") else ""}
    s_load_dwordx2 s[40:41], s[0:1], {ARG['ws']}
    s_load_dwordx2 s[42:43], s[0:1], {ARG['wg']}
    s_load_dwordx2 s[44:45], s[0:1], {ARG['wu']}
    s_and_b32 s3, s2, 15              ; mi
    s_lshr_b32 s4, s2, 4              ; fi
    s_mul_i32 s4, s4, 6
    s_min_u32 s4, s4, 80              ; u0
    v_lshrrev_b32 v1, 6, v0
    s_nop 0
    v_readfirstlane_b32 s5, v1        ; wave
    v_and_b32 v2, 63, v0              ; lane
    v_and_b32 v3, 15, v2
    v_lshrrev_b32 v4, 4, v2
    s_and_b32 s33, s5, 1              ; wm
    s_lshr_b32 s34, s5, 1             ; wf
    """)
    a("s_mul_i32 s6, s33, 192")
    a("s_mov_b32 s7, 43691")
    for i in range(3):
        a(f"""
        s_add_u32 s30, s6, {64*i}
        v_add_u32 v6, s30, v2             ; p
        v_mul_lo_u32 v7, v6, s7
        v_lshrrev_b32 v7, 19, v7          ; row
        v_mul_u32_u24 v8, 12, v7
        v_sub_u32 v6, v6, v8              ; chunk
        v_mul_u32_u24 v7, {F*2}, v7
        v_lshl_add_u32 v{10+i}, v6, 4, v7
        s_lshl_b32 s{25+i}, s30, 4
        """)
    a(f"""
    s_mul_i32 s30, s34, 6144
    s_add_u32 s25, s25, s30
    s_add_u32 s26, s26, s30
    s_add_u32 s27, s27, s30
    s_lshl_b32 s20, s4, 5
    v_lshlrev_b32 v5, 4, v2
    s_lshl_b32 s30, s3, 3
    s_lshl_b32 s31, s5, 1
    s_add_u32 s30, s30, s31
    s_lshl_b32 s21, s30, 14
    s_add_u32 s22, s21, 0x4000
    s_lshl_b32 s23, s5, 11
    s_add_u32 s23, s23, 12288
    s_add_u32 s24, s23, 1024
    s_waitcnt lgkmcnt(0)
    s_cmp_eq_u32 s34, 0
    s_cselect_b32 s46, s42, s44
    s_cselect_b32 s47, s43, s45
    """)
    srd(a, 8, 40, S * D * 2, XN_OFF)
    srd(a, 12, 40, S * F * 2, H_OFF)
    srd(a, 16, 46, D * F * 2)
    stamp(a)
    NK = 16
    DD = G1_D
    NSX = 2
    ACC = 32
    WF = ACC + 96
    XF = WF + 48

    def issue_slot(t):
        buf = t % DD
        for j in range(3):
            a(f"s_add_u32 m0, s{25+j}, {buf*G1_STAGE}")
            a("s_nop 0")
            a(f"buffer_load_dwordx4 v{10+j}, s[16:19], s20 offen lds")
        for i in range(2):
            a(f"s_add_u32 m0, s{23+i}, {buf*G1_STAGE}")
            a("s_nop 0")
            a(f"buffer_load_dwordx4 v5, s[8:11], s{21+i} offen lds")
        a("v_add_u32 v5, 0x400, v5")
        a(f"s_add_u32 s20, s20, {32*F*2}")

    for t in range(DD):
        issue_slot(t)
    a(f"""
    v_lshrrev_b32 v6, 2, v3           ; r
    v_lshl_add_u32 v6, v4, 3, v6      ; 8g + r
    v_mul_u32_u24 v6, 192, v6
    v_and_b32 v7, 3, v3
    v_lshl_add_u32 v6, v7, 3, v6
    s_mul_i32 s35, s34, 96
    v_add_u32 v6, s35, v6
    """)
    VW0 = 16
    VX0 = 22
    a("""
    v_lshlrev_b32 v7, 4, v2
    s_lshl_b32 s35, s33, 12
    s_add_u32 s35, s35, 12288
    v_add_u32 v7, s35, v7
    """)
    for st in range(DD):
        a(f"v_add_u32 v{VW0+st}, {st*G1_STAGE}, v6")
        a(f"v_add_u32 v{VX0+st}, {st*G1_STAGE}, v7")
    for i in range(96):
        a(f"v_mov_b32 v{ACC+i}, 0")

    def frag_reads(st, setb):
        buf = st % DD
        out = []
        for j in range(3):
            for m in range(2):
                for hf in range(2):
                    r0 = setb + 8 * j + 4 * m + 2 * hf
                    out.append(f"ds_read_b64_tr_b16 v[{r0}:{r0+1}], v{VW0+buf} offset:{m*6144 + j*32 + hf*768}")
        xs_ = XF + 16 * (st % 2)
        for i in range(4):
            out.insert(3 * i, f"ds_read_b128 v[{xs_+4*i}:{xs_+4*i+3}], v{VX0+buf} offset:{i*1024}")
        return out

    a(f"s_waitcnt vmcnt({5*(DD-1)})")
    a("s_barrier")
    for r in frag_reads(0, WF):
        a(r)
    a("s_waitcnt lgkmcnt(0)")
    for it in range(NK):
        if it in (0, 1, 8): stamp(a)
        cur = WF + 24 * (it % 2)
        nxt = WF + 24 * ((it + 1) % 2)
        xs = XF + 16 * (it % NSX)
        if it + 1 < NK:
            issued = min(NK, DD + it)
            a(f"s_waitcnt vmcnt({5*(issued-(it+2))})")
            a("s_barrier")
            if it + DD < NK:
                issue_slot(it + DD)
            reads = frag_reads(it + 1, nxt)
        else:
            reads = []
        idx = 0
        for j in range(6):
            for i in range(4):
                if idx < len(reads):
                    a(reads[idx])
                    idx += 1
                ac = ACC + (j * 4 + i) * 4
                a(f"v_mfma_f32_16x16x32_bf16 v[{ac}:{ac+3}], v[{cur+4*j}:{cur+4*j+3}], "
                  f"v[{xs+4*i}:{xs+4*i+3}], v[{ac}:{ac+3}]")
        a("s_waitcnt lgkmcnt(0)")
    a("s_nop 15")
    stamp(a)
    a(f"""
    v_lshrrev_b32 v6, 1, v4           ; fg/2
    v_lshlrev_b32 v6, 8, v6           ; *16*16
    v_lshl_add_u32 v6, v3, 4, v6      ; + s16*16
    v_and_b32 v7, 1, v4
    v_lshl_add_u32 v6, v7, 3, v6      ; + (fg%2)*8
    s_lshl_b32 s31, s3, 3
    s_lshl_b32 s32, s33, 2
    s_add_u32 s31, s31, s32
    s_mul_i32 s31, s31, {43*1024}
    s_mul_i32 s32, s34, 3
    s_add_u32 s32, s32, s4            ; U0 = u0 + 3wf
    """)
    T = 20
    a("s_mov_b32 s40, 0xbfb8aa3b")
    a("s_mov_b32 s41, 0xbfb8aa3b")
    for j in range(3):
        for i in range(4):
            g = ACC + ((2 * j) * 4 + i) * 4
            u = ACC + ((2 * j + 1) * 4 + i) * 4
            a(f"v_pk_mul_f32 v[{T}:{T+1}], v[{g}:{g+1}], s[40:41]")
            a(f"v_pk_mul_f32 v[{T+2}:{T+3}], v[{g+2}:{g+3}], s[40:41]")
            for q in range(4):
                a(f"v_exp_f32 v{T+q}, v{T+q}")
            a(f"v_pk_mul_f32 v[{g}:{g+1}], v[{g}:{g+1}], v[{u}:{u+1}]")
            a(f"v_pk_mul_f32 v[{g+2}:{g+3}], v[{g+2}:{g+3}], v[{u+2}:{u+3}]")
            a(f"v_pk_add_f32 v[{T}:{T+1}], v[{T}:{T+1}], 1.0 op_sel_hi:[1,0]")
            a(f"v_pk_add_f32 v[{T+2}:{T+3}], v[{T+2}:{T+3}], 1.0 op_sel_hi:[1,0]")
            for q in range(4):
                a(f"v_rcp_f32 v{T+q}, v{T+q}")
            a(f"s_add_u32 s36, s32, {j}")
            a("s_lshr_b32 s35, s36, 1")
            a("s_lshl_b32 s35, s35, 10")
            a("s_and_b32 s36, s36, 1")
            a("s_lshl_b32 s36, s36, 9")
            a("s_add_u32 s35, s35, s36")
            a("s_add_u32 s35, s35, s31")
            a(f"s_add_u32 s35, s35, {i*43*1024}")
            a(f"v_pk_mul_f32 v[{g}:{g+1}], v[{g}:{g+1}], v[{T}:{T+1}]")
            a(f"v_pk_mul_f32 v[{g+2}:{g+3}], v[{g+2}:{g+3}], v[{T+2}:{T+3}]")
            a(f"v_cvt_pk_bf16_f32 v{g}, v{g}, v{g+1}")
            a(f"v_cvt_pk_bf16_f32 v{g+1}, v{g+2}, v{g+3}")
            a(f"buffer_store_dwordx2 v[{g}:{g+1}], v6, s[12:15], s35 offen")
    stamp(a)
    if os.environ.get("STAMP_CV"): _stamp_n[0] = 0
    else: stamp_flush(a, "G1")
    wg_end(a, 1, "G1")
    a.label("G1_END")
    a("s_endpgm")
    return a.text(), XF + 16 * NSX


CV_HP = 4160
CV_XL = 8 * CV_HP
CV_LDS = CV_XL + 96 * 80


def gen_conv():
    a = Asm()
    a.label("MID_CONV")
    if os.environ.get("PRIO_CV"): a("s_setprio " + os.environ["PRIO_CV"])
    a(f"""
    {"" if os.environ.get("CV_FIRST") else f"s_sub_u32 s2, s2, {G1_WGS}"}
    s_cmp_ge_u32 s2, {D}
    s_cbranch_scc1 CV_END
    s_load_dwordx2 s[40:41], s[0:1], {ARG['ws']}
    s_load_dwordx2 s[42:43], s[0:1], {ARG['ssm_k']}
    s_load_dwordx2 s[44:45], s[0:1], {ARG['ssm_D']}
    s_lshl_b32 s3, s2, 12             ; d*4096
    v_lshrrev_b32 v1, 6, v0
    s_nop 0
    v_readfirstlane_b32 s5, v1        ; wave
    s_waitcnt lgkmcnt(0)
    """)
    srd_s(a, 8, 42, 4096, 3)
    a(f"s_add_u32 s6, s3, 0x{KVT_OFF:x}")
    srd_s(a, 12, 40, 4096, 6)
    a(f"s_add_u32 s6, s3, 0x{Y2T_OFF:x}")
    srd_s(a, 16, 40, 4096, 6)
    srd(a, 20, 44, D * 2)
    stamp(a)
    a("""
    v_lshlrev_b32 v2, 4, v0           ; 16*t
    v_add_u32 v3, 0xffffffc0, v2      ; 16*(t-4)
    buffer_load_dwordx4 v[8:11], v3, s[8:11], 0 offen
    buffer_load_dwordx4 v[12:15], v3, s[8:11], 0 offen offset:16
    buffer_load_dwordx4 v[16:19], v2, s[12:15], 0 offen
    v_add_u32 v4, 0xfc0, v2
    buffer_load_dwordx4 v[32:35], v4, s[8:11], 0 offen
    buffer_load_dwordx4 v[36:39], v4, s[8:11], 0 offen offset:16
    s_lshl_b32 s7, s2, 1
    v_mov_b32 v5, s7
    buffer_load_ushort v60, v5, s[20:23], 0 offen
    """)
    a(f"""
    v_lshrrev_b32 v5, 2, v0
    v_mul_u32_u24 v5, 80, v5
    v_and_b32 v6, 3, v0
    v_lshl_add_u32 v5, v6, 4, v5      ; (t/4)*80 + (t%4)*16
    v_mov_b32 v28, 0
    v_mov_b32 v29, 0
    v_mov_b32 v30, 0
    v_mov_b32 v31, 0
    v_cmp_gt_u32 vcc, 128, v0
    s_and_saveexec_b64 s[30:31], vcc
    ds_write_b128 v5, v[28:31] offset:{CV_XL}
    s_mov_b64 exec, s[30:31]
    s_waitcnt vmcnt(4)
    """)

    def build(wbase, addr, off0):
        for m in range(7):
            a(f"v_alignbit_b32 v{20+m}, v{wbase+m+1}, v{wbase+m}, 16")
        for rho in range(8):
            sig = rho + 1
            if sig % 2:
                m = (sig - 1) // 2
                src = 20 + m
            else:
                src = wbase + sig // 2
            if src % 2:
                for q in range(4):
                    a(f"v_mov_b32 v{40+q}, v{src+q}")
                src = 40
            a(f"ds_write_b128 v{addr}, v[{src}:{src+3}] offset:{rho*CV_HP+off0}")

    build(8, 2, 0)
    a("s_waitcnt vmcnt(3)")
    a(f"ds_write_b128 v5, v[16:19] offset:{CV_XL+32*80}")
    a("s_waitcnt vmcnt(1)")
    a("v_cmp_gt_u32 vcc, 4, v0")
    a("s_and_saveexec_b64 s[30:31], vcc")
    build(32, 2, 4096)
    a("s_mov_b64 exec, s[30:31]")
    a(f"""
    v_and_b32 v1, 63, v0              ; lane
    v_and_b32 v2, 31, v1              ; b / n
    v_lshrrev_b32 v3, 5, v1
    v_and_b32 v4, 7, v2               ; rho
    v_mul_u32_u24 v4, {CV_HP}, v4
    v_lshrrev_b32 v5, 3, v2
    v_lshl_add_u32 v4, v5, 4, v4
    v_lshlrev_b32 v5, 4, v3
    v_sub_u32 v4, v4, v5              ; -16kg
    s_lshl_b32 s6, s5, 6
    s_add_u32 s6, s6, 16              ; 64w + 48 - 32
    v_add_u32 v4, s6, v4              ; vA
    v_mul_u32_u24 v6, 80, v2
    v_add_u32 v6, v6, v5              ; n*80 + kg*16
    s_mul_i32 s6, s5, 80
    s_sub_u32 s6, {CV_XL + (32-60)*80}, s6
    v_add_u32 v6, s6, v6              ; vB
    s_waitcnt lgkmcnt(0)
    s_barrier
    """)
    stamp(a)
    ACC0, ACC1 = 64, 80
    for i in range(32):
        a(f"v_mov_b32 v{ACC0+i}, 0")
    steps = [(i, ks) for i in range(16) for ks in range(2)]
    FRB = 96
    def reads(n):
        i, ks = steps[n]
        fb = FRB + 12 * (n % 3)
        r = [f"ds_read_b128 v[{fb}:{fb+3}], v4 offset:{256*i + 32*(1-ks)}"]
        r.append(f"ds_read_b128 v[{fb+4}:{fb+7}], v6 offset:{(15-i)*320 + ks*32 + 2560}")
        if i < 8:
            r.append(f"ds_read_b128 v[{fb+8}:{fb+11}], v6 offset:{(15-i)*320 + ks*32}")
        return r
    for r in reads(0): a(r)
    for r in reads(1): a(r)
    for n in range(len(steps)):
        if n + 2 < len(steps):
            nx = reads(n + 2)
            for r in nx: a(r)
            a(f"s_waitcnt lgkmcnt({len(nx) + len(reads(n+1))})")
        elif n + 1 < len(steps):
            a(f"s_waitcnt lgkmcnt({len(reads(n+1))})")
        else:
            a("s_waitcnt lgkmcnt(0)")
        i, ks = steps[n]
        fb = FRB + 12 * (n % 3)
        a(f"v_mfma_f32_32x32x16_bf16 v[{ACC1}:{ACC1+15}], v[{fb}:{fb+3}], v[{fb+4}:{fb+7}], v[{ACC1}:{ACC1+15}]")
        if i < 8:
            a(f"v_mfma_f32_32x32x16_bf16 v[{ACC0}:{ACC0+15}], v[{fb}:{fb+3}], v[{fb+8}:{fb+11}], v[{ACC0}:{ACC0+15}]")
    a("s_nop 15")
    a("s_nop 3")
    stamp(a)
    a("s_barrier")
    a("""
    v_lshlrev_b32 v7, 4, v1
    s_lshl_b32 s6, s5, 13
    v_add_u32 v8, s6, v7
    """)
    for q in range(8):
        a(f"ds_write_b128 v8, v[{ACC0+4*q}:{ACC0+4*q+3}] offset:{q*1024}")
    a("s_waitcnt lgkmcnt(0)")
    a("s_barrier")
    a("""
    s_lshl_b32 s6, s5, 11             ; q0*1024 = 2w*1024
    v_add_u32 v8, s6, v7
    """)
    for qq in range(2):
        for p in range(4):
            a(f"ds_read_b128 v[{96+16*qq+4*p}:{96+16*qq+4*p+3}], v8 offset:{p*8192+qq*1024}")
    a(f"""
    s_lshr_b32 s6, s5, 1
    s_mul_i32 s6, s6, 2560
    s_and_b32 s7, s5, 1
    s_lshl_b32 s7, s7, 5
    s_add_u32 s6, s6, s7
    s_add_u32 s6, s6, {CV_XL + 32*80 + 8}
    v_mul_u32_u24 v9, 80, v2
    v_lshlrev_b32 v10, 3, v3
    v_sub_u32 v9, v9, v10
    v_add_u32 v9, s6, v9
    ds_read_b64 v[56:57], v9
    ds_read_b64 v[58:59], v9 offset:16
    s_waitcnt lgkmcnt(0)
    s_waitcnt vmcnt(0)
    v_lshlrev_b32 v60, 16, v60
    """)
    a("""
    s_lshr_b32 s6, s5, 1
    s_lshl_b32 s6, s6, 11
    s_and_b32 s7, s5, 1
    s_lshl_b32 s7, s7, 5
    s_add_u32 s6, s6, s7
    v_lshlrev_b32 v11, 6, v2
    v_lshl_add_u32 v11, v3, 3, v11
    v_add_u32 v11, s6, v11
    """)
    for qq in range(2):
        y = 96 + 16 * qq
        for r in range(4):
            a(f"v_add_f32 v{y+r}, v{y+r}, v{y+4+r}")
            a(f"v_add_f32 v{y+8+r}, v{y+8+r}, v{y+12+r}")
            a(f"v_add_f32 v{y+r}, v{y+r}, v{y+8+r}")
        round2(a, y, y + 1, 44)
        round2(a, y + 2, y + 3, 44)
        dA, dB = 56 + 2 * qq, 57 + 2 * qq
        unpack2(a, 48, 49, dA)
        unpack2(a, 50, 51, dB)
        for t in (48, 49, 50, 51):
            a(f"v_mul_f32 v{t}, v{t}, v60")
        round2(a, 48, 49, 44)
        round2(a, 50, 51, 44)
        a(f"v_add_f32 v{y}, v{y}, v51")
        a(f"v_add_f32 v{y+1}, v{y+1}, v50")
        a(f"v_add_f32 v{y+2}, v{y+2}, v49")
        a(f"v_add_f32 v{y+3}, v{y+3}, v48")
        a(f"v_cvt_pk_bf16_f32 v{52}, v{y}, v{y+1}")
        a(f"v_cvt_pk_bf16_f32 v{53}, v{y+2}, v{y+3}")
        a(f"buffer_store_dwordx2 v[52:53], v11, s[16:19], 0 offen offset:{16*qq}")
        a("s_nop 0")
    stamp(a)
    if os.environ.get("STAMP_CV"): stamp_flush(a, "CV")
    else: _stamp_n[0] = 0
    wg_end(a, 1, "CV")
    a.label("CV_END")
    a("s_endpgm")
    return a.text(), 132


G2_PP = 272
G2_PW = 64 * G2_PP
G2_YL = 0
G2_YP = 144
G2_P0 = 64 * G2_YP
G2_D = int(os.environ.get('G2D', '4'))
G2_LDS0 = G2_P0 + 4 * G2_PW
G2_LDS = G2_LDS0 + 4 * G2_D * 4096


def gen_gemm2():
    a = Asm()
    a(f"""
    s_cmp_ge_u32 s2, 256
    s_cbranch_scc1 G2_END
    s_load_dwordx2 s[40:41], s[0:1], {ARG['ws']}
    s_load_dwordx2 s[42:43], s[0:1], {ARG['q']}
    s_load_dwordx2 s[44:45], s[0:1], {ARG['out']}
    s_load_dwordx2 s[46:47], s[0:1], {ARG['wd']}
    s_and_b32 s3, s2, 31              ; si
    s_lshr_b32 s4, s2, 5              ; di
    v_lshrrev_b32 v1, 6, v0
    s_nop 0
    v_readfirstlane_b32 s5, v1        ; wave
    v_and_b32 v2, 63, v0
    v_and_b32 v3, 15, v2
    v_lshrrev_b32 v4, 4, v2
    s_waitcnt lgkmcnt(0)
    """)
    srd(a, 8, 40, S * F * 2, H_OFF)
    srd(a, 12, 46, D * F * 2)
    srd(a, 16, 40, S * D * 2, Y2T_OFF)
    srd(a, 20, 40, S * D * 2, XN_OFF)
    srd(a, 24, 42, S * D * 2)
    srd(a, 28, 44, S * D * 2)
    stamp(a)
    a(f"""
    s_movk_i32 s34, {F*2}
    s_lshl_b32 s35, s3, 6             ; s0
    s_lshl_b32 s36, s4, 6             ; d0
    v_lshlrev_b32 v7, 4, v2           ; lane*16
    s_mul_i32 s38, s3, {4*43*1024}
    v_add_u32 v5, s38, v7
    s_mul_i32 s37, s5, {11*1024}
    s_mul_i32 s39, s5, {11*32*1024}
    s_lshl_b32 s38, s36, 1
    s_add_u32 s39, s39, s38           ; + d0*2
    v_lshrrev_b32 v6, 3, v2
    v_and_b32 v12, 7, v2
    v_lshrrev_b32 v13, 1, v6
    v_and_b32 v13, 1, v13
    v_lshlrev_b32 v13, 1, v13         ; sw
    v_xor_b32 v12, v12, v13
    v_lshlrev_b32 v6, 10, v6
    v_lshl_add_u32 v6, v12, 4, v6
    """)
    for i in range(1, 4):
        a(f"v_add_u32 v{8+i}, {i*43*1024}, v5")
        a(f"v_add_u32 v{12+i}, {i*8192}, v6")
    a("v_mov_b32 v8, v5")
    a("v_mov_b32 v12, v6")
    a(f"""
    v_lshrrev_b32 v16, 2, v0
    v_and_b32 v17, 3, v0
    v_add_u32 v18, s36, v16
    v_lshlrev_b32 v18, 12, v18
    v_lshl_add_u32 v18, v17, 5, v18
    s_lshl_b32 s38, s35, 1
    v_add_u32 v18, s38, v18
    buffer_load_dwordx4 v[20:23], v18, s[16:19], 0 offen
    buffer_load_dwordx4 v[24:27], v18, s[16:19], 0 offen offset:16
    v_mul_u32_u24 v19, {G2_YP}, v16
    v_lshl_add_u32 v19, v17, 5, v19
    """)
    a("""
    v_lshrrev_b32 v28, 3, v0
    v_and_b32 v29, 7, v0
    v_add_u32 v30, s35, v28
    v_lshlrev_b32 v30, 10, v30
    v_lshl_add_u32 v30, v29, 4, v30
    s_lshl_b32 s38, s36, 1
    v_add_u32 v30, s38, v30                ; x offset
    v_add_u32 v31, s35, v28
    v_lshrrev_b32 v7, 4, v31
    v_lshlrev_b32 v7, 14, v7
    v_and_b32 v31, 15, v31
    v_lshl_add_u32 v7, v31, 4, v7
    v_lshrrev_b32 v31, 2, v29
    s_lshr_b32 s38, s36, 5
    v_add_u32 v31, s38, v31
    v_lshl_add_u32 v7, v31, 10, v7
    v_and_b32 v31, 3, v29
    v_lshl_add_u32 v7, v31, 8, v7
    buffer_load_dwordx4 v[224:227], v30, s[24:27], 0 offen
    buffer_load_dwordx4 v[228:231], v7, s[20:23], 0 offen
    v_add_u32 v30, 0x8000, v30
    v_add_u32 v7, 0x8000, v7
    buffer_load_dwordx4 v[232:235], v30, s[24:27], 0 offen
    buffer_load_dwordx4 v[236:239], v7, s[20:23], 0 offen
    """)
    ACC = 32
    DD = G2_D
    NS = DD + 1
    HF = 96
    WF = HF + 16 * NS
    a(f"s_mul_i32 s48, s5, {DD*4096}")
    a(f"s_add_u32 s48, s48, {G2_LDS0}")

    def slot(t):
        buf = t % DD
        for b in range(4):
            a(f"s_add_u32 m0, s48, {buf*4096 + b*1024}")
            a("s_nop 0")
            a(f"buffer_load_dwordx4 v{12+b}, s[12:15], s39 offen lds")
        hs = HF + 16 * (t % NS)
        for i in range(4):
            a(f"buffer_load_dwordx4 v[{hs+4*i}:{hs+4*i+3}], v{8+i}, s[8:11], s37 offen")
        a("s_add_u32 s37, s37, 1024")
        a("s_add_u32 s39, s39, 32768")
    for t in range(DD):
        slot(t)
    for i in range(64):
        a(f"v_mov_b32 v{ACC+i}, 0")
    a(f"""
    v_lshrrev_b32 v28, 2, v3          ; r
    v_and_b32 v29, 3, v3              ; c
    v_lshl_add_u32 v31, v4, 3, v28    ; 8g + r
    v_lshlrev_b32 v31, 7, v31
    v_lshl_add_u32 v31, v29, 3, v31
    v_lshrrev_b32 v28, 1, v28         ; sw
    v_lshlrev_b32 v28, 5, v28
    v_add_u32 v31, s48, v31
    v_add_u32 v28, v31, v28
    v_xor_b32 v29, 32, v28
    """)

    def wreads(t):
        buf = t % DD
        ws_ = WF + 16 * (t % 2)
        out = []
        for db in range(4):
            for hf in range(2):
                out.append(f"ds_read_b64_tr_b16 v[{ws_+4*db+2*hf}:{ws_+4*db+2*hf+1}], v{28+(db%2)} "
                           f"offset:{buf*4096 + (db//2)*64 + hf*512}")
        return out
    NST = 11
    a(f"s_waitcnt vmcnt({8*(DD-1)})")
    for r in wreads(0): a(r)
    a("s_waitcnt lgkmcnt(0)")
    for st in range(NST):
        if st in (1, 6): stamp(a)
        if st == NST - 1:
            a("s_cmp_eq_u32 s5, 3")
            a("s_cbranch_scc1 G2_SKIP")
        if st + 1 < NST:
            issued = min(NST, DD + st)
            a(f"s_waitcnt vmcnt({8*(issued-(st+2))})")
            if st + DD < NST:
                slot(st + DD)
            reads = wreads(st + 1)
        else:
            reads = []
        hs = HF + 16 * (st % NS)
        ws_ = WF + 16 * (st % 2)
        idx = 0
        for db in range(4):
            for sb in range(4):
                if idx < len(reads) and sb % 2 == 0:
                    a(reads[idx]); idx += 1
                ac = ACC + (db * 4 + sb) * 4
                a(f"v_mfma_f32_16x16x32_bf16 v[{ac}:{ac+3}], v[{ws_+4*db}:{ws_+4*db+3}], "
                  f"v[{hs+4*sb}:{hs+4*sb+3}], v[{ac}:{ac+3}]")
        a("s_waitcnt lgkmcnt(0)")
    a.label("G2_SKIP")
    a("s_nop 15")
    stamp(a)
    a(f"ds_write_b128 v19, v[20:23] offset:{G2_YL}")
    a(f"ds_write_b128 v19, v[24:27] offset:{G2_YL+16}")
    a(f"""
    v_mul_u32_u24 v5, {G2_PP}, v3
    v_lshl_add_u32 v5, v4, 4, v5
    s_mul_i32 s38, s5, {G2_PW}
    s_add_u32 s38, s38, {G2_P0}
    v_add_u32 v5, s38, v5
    """)
    for db in range(4):
        for sb in range(4):
            ac = ACC + (db * 4 + sb) * 4
            a(f"ds_write_b128 v5, v[{ac}:{ac+3}] offset:{sb*16*G2_PP + db*64}")
    a("s_waitcnt lgkmcnt(0)")
    stamp(a)
    a("s_barrier")
    stamp(a)
    a(f"""
    v_lshrrev_b32 v1, 3, v0
    v_and_b32 v2, 7, v0
    v_mul_u32_u24 v3, {G2_PP}, v1
    v_lshl_add_u32 v3, v2, 5, v3
    v_add_u32 v3, {G2_P0}, v3
    v_add_u32 v7, {2*G2_PW}, v3
    v_mul_u32_u24 v4, {8*G2_YP}, v2
    v_lshl_add_u32 v4, v1, 1, v4          ; y2 addr
    v_add_u32 v5, s35, v1
    v_lshlrev_b32 v5, 10, v5
    v_lshl_add_u32 v5, v2, 4, v5
    s_lshl_b32 s38, s36, 1
    v_add_u32 v5, s38, v5
    """)
    for p in range(2):
        a(f"v_add_u32 v6, {p*32*1024}, v5")
        for w in range(4):
            ar = 3 if w < 2 else 7
            a(f"ds_read_b128 v[{32+8*w}:{35+8*w}], v{ar} offset:{(w%2)*G2_PW + p*32*G2_PP}")
            a(f"ds_read_b128 v[{36+8*w}:{39+8*w}], v{ar} offset:{(w%2)*G2_PW + p*32*G2_PP + 16}")
        for i in range(8):
            a(f"ds_read_u16 v{64+i}, v4 offset:{G2_YL + i*G2_YP + p*64}")
        a("s_waitcnt lgkmcnt(0)")
        for i in range(8):
            a(f"v_add_f32 v{32+i}, v{32+i}, v{40+i}")
            a(f"v_add_f32 v{48+i}, v{48+i}, v{56+i}")
            a(f"v_add_f32 v{32+i}, v{32+i}, v{48+i}")
            a(f"v_lshlrev_b32 v{64+i}, 16, v{64+i}")
        for m in range(4):
            unpack2(a, 72 + 2 * m, 73 + 2 * m, 224 + 8 * p + m)
            unpack2(a, 80 + 2 * m, 81 + 2 * m, 228 + 8 * p + m)
        for m in range(4):
            e0, e1 = 2 * m, 2 * m + 1
            a(f"v_mul_f32 v{80+e0}, v{80+e0}, v{64+e0}")
            a(f"v_mul_f32 v{80+e1}, v{80+e1}, v{64+e1}")
            round2(a, 80 + e0, 80 + e1, 88)
            a(f"v_add_f32 v{72+e0}, v{72+e0}, v{80+e0}")
            a(f"v_add_f32 v{72+e1}, v{72+e1}, v{80+e1}")
            round2(a, 72 + e0, 72 + e1, 88)
            round2(a, 32 + e0, 32 + e1, 88)
            a(f"v_add_f32 v{72+e0}, v{72+e0}, v{32+e0}")
            a(f"v_add_f32 v{72+e1}, v{72+e1}, v{32+e1}")
            a(f"v_cvt_pk_bf16_f32 v{8+m}, v{72+e0}, v{72+e1}")
        G2ST = "sc0 sc1"
        if G2ST != "none":
            a("buffer_store_dwordx4 v[8:11], v6, s[28:31], 0 offen " + G2ST)
        a("s_nop 1")
    stamp(a)
    stamp_flush(a, "G2"); wg_end(a, 2, "G2")
    a.label("G2_END")
    a("s_endpgm")
    return a.text(), 240


def main():
    hdr = open(os.path.join(os.path.dirname(__file__), "header.txt")).read()
    g1, v1 = gen_gemm1()
    cv, v2 = gen_conv()
    kernels = [("prep_kernel", gen_prep(), (PREP_WGS, 256, 8192)),
               ("mid_kernel", (g1 + cv, max(v1, v2)), (G1_WGS + (0 if os.environ.get("MID_ONLY") == "g1" else D), 256, max(G1_LDS, CV_LDS))),
               ("gemm2_kernel", gen_gemm2(), (256, 256, G2_LDS))]
    out = hdr
    for n, _, (g, b, l) in kernels:
        out += f"; @launch kernel={n} grid=({g},1,1) block=({b},1,1) lds={l}\n"
    out += '.amdgcn_target "amdgcn-amd-amdhsa--gfx950"\n.text\n'
    for n, (body, _), _ in kernels:
        out += kernel_header(n) + body
    out += '.section .rodata,"a"\n'
    for n, (_, vg), _ in kernels:
        out += kernel_desc(n, 256 if (STAMPS or WGST) else vg)
    dst = sys.argv[1] if len(sys.argv) > 1 else f"cdna_kernels/{NAME}.s"
    open(dst, "w").write(out)
    print("wrote", dst, len(out))


if __name__ == "__main__":
    main()
```
